```python
import torch

def _softmax(x, axis=-1):
    return torch.softmax(x, dim=axis)
def _gelu(x):
    return torch.nn.functional.gelu(x, approximate="tanh")
def _silu(x):
    return torch.nn.functional.silu(x)
def _sigmoid(x):
    return torch.sigmoid(x)
def _layernorm(x, axis=-1, eps=1e-5):
    m = x.mean(dim=axis, keepdim=True)
    v = x.var(dim=axis, keepdim=True, unbiased=False)
    return (x - m) / torch.sqrt(v + eps)
def _scatter_add(tgt, idx, src, axis=0):
    return tgt.clone().index_add_(axis, idx, src)
def _segment_sum(src, seg, n):
    out = torch.zeros((n,) + src.shape[1:], dtype=src.dtype)
    return out.index_add_(0, seg, src)
def _pad(x, pw):
    flat = tuple(v for pair in reversed(pw) for v in pair)
    return torch.nn.functional.pad(x, flat)

kernel_name = 'gated_mix__ssm_conv_s5__linear_kernel_hedgehog__prompt'

def setup_inputs():

    _w = (lambda a: (lambda t: t.to(torch.bfloat16) if t.is_floating_point() else t)(torch.as_tensor(a)))
    def _A_setup():
        B, S, D = 1, 2048, 512
        P = D
        Lambda_re = -0.5 * (lambda _x: torch.exp(torch.as_tensor(_x)))((lambda *s: torch.randn(*s, dtype=torch.bfloat16) * 0.8)(P))
        Lambda_im = (lambda *s: torch.randn(*s, dtype=torch.bfloat16) * 0.8)(P) * 1.0
        B_re = (lambda *s: torch.randn(*s, dtype=torch.bfloat16) * 0.8)(P, D) * (D ** -0.5)
        B_im = (lambda *s: torch.randn(*s, dtype=torch.bfloat16) * 0.8)(P, D) * (D ** -0.5)
        C_re = (lambda *s: torch.randn(*s, dtype=torch.bfloat16) * 0.8)(D, P) * (P ** -0.5)
        C_im = (lambda *s: torch.randn(*s, dtype=torch.bfloat16) * 0.8)(D, P) * (P ** -0.5)
        log_dt = (lambda *s: torch.randn(*s, dtype=torch.bfloat16) * 0.8)(P) * 0.3 - 2.0
        Dskip = (lambda *s: torch.randn(*s, dtype=torch.bfloat16) * 0.8)(D)
        return {
            "x": _w((lambda *s: torch.randn(*s, dtype=torch.bfloat16) * 0.05)(B, S, D)),
            "Lambda_re": _w(Lambda_re),
            "Lambda_im": _w(Lambda_im),
            "B_re": _w(B_re),
            "B_im": _w(B_im),
            "C_re": _w(C_re),
            "C_im": _w(C_im),
            "log_dt": _w(log_dt),
            "Dskip": _w(Dskip),
        }
    _A_in = _A_setup()

    def _B_setup():
        B, S, D, H = 1, 2048, 512, 32
        Dh = D // H
        return {
            "x": _w((lambda *s: torch.randn(*s, dtype=torch.bfloat16) * 0.05)(B, S, D)),
            "wqkv": _w((lambda *s: torch.randn(*s, dtype=torch.bfloat16) * 1.6)(D, 3 * D)),
            "w_phi": _w((lambda *s: torch.randn(*s, dtype=torch.bfloat16) * 1.6)(H, Dh, Dh) * (Dh ** -0.5)),
            "wo": _w((lambda *s: torch.randn(*s, dtype=torch.bfloat16) * 0.05)(D, D)),
        }
    _B_in = _B_setup()

    return {
        "A_x": _A_in["x"],
        "A_Lambda_re": _A_in["Lambda_re"],
        "A_Lambda_im": _A_in["Lambda_im"],
        "A_B_re": _A_in["B_re"],
        "A_B_im": _A_in["B_im"],
        "A_C_re": _A_in["C_re"],
        "A_C_im": _A_in["C_im"],
        "A_log_dt": _A_in["log_dt"],
        "A_Dskip": _A_in["Dskip"],
        "B_x": _B_in["x"],
        "B_wqkv": _B_in["wqkv"],
        "B_w_phi": _B_in["w_phi"],
        "B_wo": _B_in["wo"],
        "gate_w": _w((lambda *s: torch.randn(*s, dtype=torch.bfloat16) * 0.05)(512) * 16.0),
    }

def reference(A_x, A_Lambda_re, A_Lambda_im, A_B_re, A_B_im, A_C_re, A_C_im, A_log_dt, A_Dskip, B_x, B_wqkv, B_w_phi, B_wo, gate_w):
    def _A_ref(x, Lambda_re, Lambda_im, B_re, B_im, C_re, C_im, log_dt, Dskip):
        Bsz, L, H = x.shape
        Lam = Lambda_re + 1j * Lambda_im
        Bmat = B_re + 1j * B_im
        Cmat = C_re + 1j * C_im
        dt = torch.exp(log_dt)
        Lam_bar = torch.exp(dt * Lam)
        B_bar = ((Lam_bar - 1.0) / Lam)[:, None] * Bmat
        Bu = torch.einsum("bld,pd->blp", x + 0j, B_bar)
        h = torch.zeros_like(Bu[:, 0, :])
        hs = []
        for t in range(L):
            h = Lam_bar[None, :] * h + Bu[:, t, :]
            hs.append(h)
        hseq = torch.stack(hs, 1)
        y = 2.0 * torch.einsum("blp,dp->bld", hseq, Cmat).real + x * Dskip[None, None, :]
        return y

    def _B_ref(x, wqkv, w_phi, wo):
        B, S, D = x.shape
        H = 32; Dh = D // H
        qkv = (lambda x, *d: x.permute(*d))((x @ wqkv).reshape(B, S, 3, H, Dh), 2, 0, 3, 1, 4)
        q, k, v = qkv[0], qkv[1], qkv[2]
        pq = torch.einsum("bhsd,hdf->bhsf", q, w_phi)
        pk = torch.einsum("bhsd,hdf->bhsf", k, w_phi)
        phi_q = torch.concatenate([_softmax(pq, axis=-1), _softmax(-pq, axis=-1)], axis=-1)
        phi_k = torch.concatenate([_softmax(pk, axis=-1), _softmax(-pk, axis=-1)], axis=-1)
        kv = torch.einsum("bhsf,bhsd->bhfd", phi_k, v)
        z  = torch.einsum("bhsf->bhf", phi_k)
        num = torch.einsum("bhqf,bhfd->bhqd", phi_q, kv)
        den = torch.einsum("bhqf,bhf->bhq", phi_q, z)[..., None] + 1e-6
        o = num / den
        return (lambda x, *d: x.permute(*d))(o, 0, 2, 1, 3).reshape(B, S, D) @ wo

    x = A_x
    g = _sigmoid((x * gate_w).sum(-1, keepdims=True))
    a = _A_ref(x, A_Lambda_re, A_Lambda_im, A_B_re, A_B_im, A_C_re, A_C_im, A_log_dt, A_Dskip)
    b = _B_ref(x, B_wqkv, B_w_phi, B_wo)
    return g * a + (1 - g) * b
```

```python
import re

REG_RE = re.compile(r'\b([vas])(\d+)\b|\b([vas])\[(\d+):(\d+)\]|\b(vcc_lo|vcc_hi|vcc|exec_lo|exec_hi|exec|m0|scc)\b')


def regs_of(operand):
    out = set()
    for m in REG_RE.finditer(operand):
        if m.group(1):
            out.add((m.group(1), int(m.group(2))))
        elif m.group(3):
            for i in range(int(m.group(4)), int(m.group(5)) + 1):
                out.add((m.group(3), i))
        else:
            n = m.group(6)
            if n.startswith('vcc'):
                out.add(('s', 'vcc'))
            elif n.startswith('exec'):
                out.add(('s', 'exec'))
            else:
                out.add(('s', n))
    return out


TRANS = ('v_exp_f32', 'v_log_f32', 'v_rcp_f32', 'v_rsq_f32', 'v_sqrt_f32', 'v_sin_f32', 'v_cos_f32')


class Ins:
    __slots__ = ('text', 'mn', 'kind', 'wr', 'rd', 'srcab', 'srcc', 'data', 'states', 'tag')

    def __init__(self, text, tag=None):
        self.text = text
        self.tag = tag
        t = text.split(';')[0].strip()
        self.wr = set(); self.rd = set(); self.srcab = set(); self.srcc = set(); self.data = set()
        self.states = 1
        if t.endswith(':') or t.startswith('.') or not t:
            self.mn = ''; self.kind = 'label' if t.endswith(':') else 'dir'; self.states = 0
            return
        parts = t.split(None, 1)
        mn = parts[0]; self.mn = mn
        ops = [o.strip() for o in parts[1].split(',')] if len(parts) > 1 else []
        ops2 = []; depth = 0
        for o in ops:
            if depth > 0:
                ops2[-1] += ',' + o
            else:
                ops2.append(o)
            depth = ops2[-1].count('[') - ops2[-1].count(']')
        ops = ops2
        R = [regs_of(re.sub(r'(op_sel|op_sel_hi|neg_lo|neg_hi|quad_perm):\[[^\]]*\]', '', o)) for o in ops]
        if mn.startswith('v_mfma'):
            self.kind = 'mfma'
            self.wr = R[0]; self.srcab = R[1] | R[2]; self.srcc = R[3]
            self.rd = self.srcab | self.srcc
        elif mn.startswith('v_'):
            self.kind = 'valu'
            if mn.startswith('v_permlane'):
                self.wr = R[0] | R[1]; self.rd = R[0] | R[1]
            elif mn == 'v_nop':
                pass
            else:
                self.wr = set(R[0])
                for r in R[1:]:
                    self.rd |= r
                if mn.startswith(('v_fmac', 'v_pk_fmac', 'v_dot2c', 'v_writelane')):
                    self.rd |= R[0]
                if mn.startswith(('v_add_co', 'v_sub_co', 'v_addc_co')):
                    self.wr |= R[1]
        elif mn.startswith('ds_'):
            self.kind = 'ds'
            if mn.startswith('ds_read'):
                self.wr = R[0]; self.rd = R[1]
            else:
                for r in R:
                    self.rd |= r
        elif mn.startswith(('buffer_', 'global_')):
            self.kind = 'vmem'
            islds = (' lds' in t) or mn.startswith('global_load_lds')
            if mn.startswith('buffer_load') and not islds:
                self.wr = R[0]
                for r in R[1:]:
                    self.rd |= r
            elif mn.startswith('global_load') and not islds:
                self.wr = R[0]
                for r in R[1:]:
                    self.rd |= r
            else:
                for r in R:
                    self.rd |= r
                if islds:
                    self.rd.add(('s', 'm0'))
                if mn.startswith('buffer_store') and mn.endswith(('x3', 'x4')):
                    self.data = {x for x in R[0]}
                if mn.startswith('global_store') and mn.endswith(('x3', 'x4')):
                    self.data = {x for x in R[1]}
        elif mn.startswith('s_'):
            self.kind = 'salu'
            if mn == 's_nop':
                self.states = int(ops[0]) + 1
            elif mn.startswith(('s_cmp', 's_cbranch', 's_branch', 's_waitcnt', 's_barrier', 's_endpgm', 's_sleep', 's_setprio', 's_bitcmp')):
                for r in R:
                    self.rd |= r
            else:
                self.wr = set(R[0])
                for r in R[1:]:
                    self.rd |= r
        else:
            raise ValueError('unknown instruction: ' + text)


def isv(rs):
    return {r for r in rs if r[0] in 'va'}


def iss(rs):
    return {r for r in rs if r[0] == 's'}


def need(p, c):
    n = 0
    if p.kind == 'mfma':
        passes = 8 if '32x32x16' in p.mn else 4
        big = 12 if passes == 8 else 8
        if c.kind == 'mfma':
            if p.wr & c.srcab:
                n = max(n, big)
            if p.wr & c.srcc and p.wr != c.srcc:
                n = max(n, big - 2)
            if p.wr & c.wr and p.wr != c.srcc:
                n = max(n, big)
        elif c.kind in ('valu', 'ds', 'vmem'):
            if p.wr & (c.rd | c.wr):
                n = max(n, big)
            if c.kind == 'valu' and p.srcc & c.wr:
                n = max(n, passes - 1)
    elif p.kind == 'valu':
        pv = isv(p.wr); ps = iss(p.wr)
        if c.kind == 'mfma' and pv & c.rd:
            n = max(n, 2)
        if c.kind == 'valu':
            if p.mn.startswith(TRANS) and not c.mn.startswith(TRANS) and pv & c.rd:
                n = max(n, 1)
            if c.mn.startswith('v_permlane') and pv & c.rd:
                n = max(n, 2)
            if ('_dpp' in c.mn or 'row_' in c.text or 'quad_perm' in c.text) and pv & c.rd:
                n = max(n, 2)
            if c.mn.startswith(('v_readlane', 'v_readfirstlane')) and pv & c.rd:
                n = max(n, 1)
            if ps & c.rd:
                n = max(n, 4 if c.mn.startswith(('v_readlane', 'v_writelane')) else 2)
            if p.mn.startswith('v_dot') and pv & (c.rd | c.wr):
                n = max(n, 3)
        if c.kind == 'vmem' and ps & c.rd:
            n = max(n, 5)
        if c.kind == 'salu' and ps & c.rd:
            n = max(n, 1)
    elif p.kind == 'salu':
        if ('s', 'm0') in p.wr and c.kind == 'vmem' and ('s', 'm0') in c.rd:
            n = max(n, 1)
    elif p.kind == 'vmem':
        if p.data and p.data & c.wr:
            n = max(n, 2)
    return n


class Asm:
    def __init__(self):
        self.ins = []
        self.vm = []
        self.lg = []

    def __call__(self, text, tag=None):
        for line in text.split('\n'):
            line = line.strip()
            if not line:
                continue
            self.emit(Ins(line, tag))

    def emit(self, i):
        if isinstance(i, tuple):
            getattr(self, i[0])(*i[1:])
            return
        self.ins.append(i)
        if i.kind == 'vmem':
            self.vm.append(i.tag)
        elif i.kind == 'ds':
            self.lg.append(i.tag)
        elif i.mn == 's_waitcnt':
            m = re.search(r'vmcnt\((\d+)\)', i.text)
            if m:
                n = int(m.group(1)); self.vm = self.vm[len(self.vm) - n:] if n < len(self.vm) else self.vm
            m = re.search(r'lgkmcnt\((\d+)\)', i.text)
            if m:
                n = int(m.group(1)); self.lg = self.lg[len(self.lg) - n:] if n < len(self.lg) else self.lg

    def _cnt(self, q, tags):
        last = -1
        for k, t in enumerate(q):
            if t in tags:
                last = k
        return None if last < 0 else len(q) - 1 - last

    def vwait(self, *tags):
        n = self._cnt(self.vm, tags)
        if n is not None:
            assert len(self.vm) <= 63, 'too many vmem ops in flight: %d' % len(self.vm)
            self('s_waitcnt vmcnt(%d)' % min(n, 63))

    def lwait(self, *tags):
        n = self._cnt(self.lg, tags)
        if n is not None:
            self('s_waitcnt lgkmcnt(%d)' % min(n, 15))

    def seq(self, lst):
        for i in lst:
            self.emit(i)

    def finish(self):
        out = []
        for c in self.ins:
            if c.kind in ('label', 'dir'):
                out.append(c); continue
            dist = 0; req = 0
            for p in reversed(out):
                if dist >= 14:
                    break
                if p.kind in ('label', 'dir'):
                    continue
                n = need(p, c)
                if n - dist > req:
                    req = n - dist
                dist += p.states
            if req > 0:
                out.append(Ins('s_nop %d' % (req - 1)))
            out.append(c)
        return out

    def text(self):
        L = []
        for i in self.finish():
            L.append(i.text if i.kind in ('label', 'dir') else '    ' + i.text)
        return '\n'.join(L) + '\n'


class Seq(list):
    def __call__(self, text, tag=None):
        for line in text.split('\n'):
            line = line.strip()
            if line:
                self.append(Ins(line, tag))

    def vwait(self, *tags):
        self.append(('vwait',) + tags)

    def lwait(self, *tags):
        self.append(('lwait',) + tags)


def weave(*seqs):
    seqs = [s for s in seqs if len(s)]
    pos = [0] * len(seqs)
    out = Seq()
    total = sum(len(s) for s in seqs)
    while len(out) < total:
        best = None; bf = None
        for k, s in enumerate(seqs):
            if pos[k] < len(s):
                f = (pos[k] + 0.5) / len(s)
                if bf is None or f < bf:
                    bf = f; best = k
        out.append(seqs[best][pos[best]]); pos[best] += 1
    return out


def sprinkle(main, groups, start=0.0, end=1.0):
    out = Seq()
    n = len(main); k = len(groups)
    if k == 0:
        out.extend(main); return out
    pts = [int(n * (start + (end - start) * (j + 0.5) / k)) for j in range(k)]
    j = 0
    for idx, i in enumerate(main):
        while j < k and pts[j] <= idx:
            out.extend(groups[j]); j += 1
        out.append(i)
    while j < k:
        out.extend(groups[j]); j += 1
    return out


class Alloc:
    def __init__(self, kind, lo, hi):
        self.kind = kind; self.free = [True] * hi; self.hi = hi; self.top = 0
        for i in range(lo):
            self.free[i] = False

    def get(self, n=1, align=1):
        for s in range(0, self.hi - n + 1):
            if s % align == 0 and all(self.free[s:s + n]):
                for i in range(s, s + n):
                    self.free[i] = False
                self.top = max(self.top, s + n)
                return s
        raise RuntimeError('out of %s registers (need %d)' % (self.kind, n))

    def put(self, s, n=1):
        for i in range(s, s + n):
            assert not self.free[i]
            self.free[i] = True
```

```python
import sys
from asmlib import *

NAME = 'gated_mix__ssm_conv_s5__linear_kernel_hedgehog__prompt'
KN = NAME + '_kernel'

ACT = 0
KVP = 0x600000
EB = 0x690000
GB = 0x6A0000
WS_END = 0x6A2000
STAMP = 0x800000
XR = 0; WR = 65536; AUX = 131072
L_GATE = AUX; L_PHI = AUX + 1024; L_S2 = AUX + 3072; L_KVS = AUX + 4096; L_KVX = AUX + 16384
W2A = 32768
LOG2E = 0x3fb8aa3b

sX, sLre, sLim, sBre, sBim, sCre, sCim, sLdt = 4, 6, 8, 10, 12, 14, 16, 18
sD, sWqkv, sWphi, sWo, sGate, sOut, sDbg, sWs = 20, 24, 26, 28, 30, 32, 34, 36
rX, rW, rQ, rC0, rC1, rO, rWS, rOUT, rE = 40, 44, 48, 52, 56, 60, 64, 68, 72
s_w, s_b, s_g, s_rot, s_tt, s_ct = 76, 77, 78, 79, 80, 81
s_xb, s_wb, s_qb, s_t0, s_t1, s_t2, s_spin = 82, 83, 84, 85, 86, 87, 88
s_l2e = 90
s_m0x = 92; s_m0w = 93
s_cs = 94
s_tw = 96
s_st = 98
s_sx = 22; s_sw = 23; s_act = 38; s_w2 = 39; s_tmpA = 3; s_tmpB = 89


def srd(r):
    return 's[%d:%d]' % (r, r + 3)


def v(a, n=1):
    return 'v%d' % a if n == 1 else 'v[%d:%d]' % (a, a + n - 1)


def ag(a, n=1):
    return 'a%d' % a if n == 1 else 'a[%d:%d]' % (a, a + n - 1)


def s(a, n=1):
    return 's%d' % a if n == 1 else 's[%d:%d]' % (a, a + n - 1)


BLO = 'op_sel:[0,0,0] op_sel_hi:[0,1,1]'
BHI = 'op_sel:[1,0,0] op_sel_hi:[1,1,1]'
BLO2 = 'op_sel:[0,0] op_sel_hi:[0,1]'
BHI2 = 'op_sel:[1,0] op_sel_hi:[1,1]'
NEG0 = 'neg_lo:[1,0,0] neg_hi:[1,0,0]'
NEG02 = 'neg_lo:[1,0] neg_hi:[1,0]'


def cmul(A, d, a, b, c=None):
    assert d != a and d != b
    if c is None:
        A('v_pk_mul_f32 %s, %s, %s %s' % (v(d, 2), v(a, 2), v(b, 2), BLO2))
    else:
        A('v_pk_fma_f32 %s, %s, %s, %s %s' % (v(d, 2), v(a, 2), v(b, 2), v(c, 2), BLO))
    A('v_pk_fma_f32 %s, %s, %s, %s op_sel:[1,1,0] op_sel_hi:[1,0,1] neg_lo:[1,0,0]' % (v(d, 2), v(a, 2), v(b, 2), v(d, 2)))


def spin(lab):
    return '\n'.join(['s_cmp_eq_u32 %s, 0' % s(s_spin), 's_cbranch_scc1 %s_d' % lab, 's_sub_u32 %s, %s, 1' % (s(s_spin), s(s_spin))])


def mfma(A, d, a, b, c):
    A('v_mfma_f32_32x32x16_bf16 %s, %s, %s, %s' % (d, a, b, c))


class Gen:
    def __init__(self, opt):
        self.o = opt
        self.A = Asm()
        self.tail = []
        self.nst = 0

    def raw(self, text):
        self.A.ins.append(Ins(text))

    def stamp(self, A=None):
        if not self.o.get('stamps'):
            return
        A = A if A is not None else self.A
        k = self.nst; self.nst += 1
        if k > 0:
            A('v_writelane_b32 %s, %s, %d' % (v(self.vST), s(s_st + 2 * ((k - 1) & 1)), k - 1))
        A('s_memrealtime %s' % s(s_st + 2 * (k & 1), 2))

    def prologue(self):
        A = self.A
        A('s_cmp_ge_u32 s2, 256')
        A('s_cbranch_scc1 L_end')
        A('s_load_dwordx16 s[4:19], s[0:1], 0')
        A('s_load_dwordx16 s[20:35], s[0:1], 64')
        A('s_load_dwordx2 s[36:37], s[0:1], 128')
        if self.o.get('stamps'):
            A('s_memrealtime %s' % s(s_st, 2)); self.nst = 1
        A('v_lshrrev_b32 v1, 6, v0')
        A('v_and_b32 v0, 63, v0')
        A('v_readfirstlane_b32 %s, v1' % s(s_w))
        A('s_and_b32 %s, s2, 1' % s(s_t0))
        A('s_bfe_u32 %s, s2, 0x30003' % s(s_t1))
        A('s_lshl_b32 %s, %s, 3' % (s(s_t0), s(s_t0)))
        A('s_add_u32 %s, %s, %s' % (s(s_b), s(s_t0), s(s_t1)))
        A('s_and_b32 %s, s2, 6' % s(s_t0))
        A('s_lshr_b32 %s, s2, 7' % s(s_t1))
        A('s_add_u32 %s, %s, %s' % (s(s_g), s(s_t0), s(s_t1)))
        A('s_bitcmp1_b32 s2, 6')
        A('s_cbranch_scc1 L_S')

    def path(self, T):
        o = self.o; A = self.A
        A.vm = []; A.lg = []
        S = (T == 'S'); ty = 1 if S else 0
        V = Alloc('v', 1, 256)
        self.V = V
        if o.get('stamps'):
            self.nst = 1
            self.vST = V.get()
        t0, t1, t2, t3 = [V.get() for _ in range(4)]
        XD = V.get(4); WD = V.get(4)
        vq4 = V.get(); vswz = V.get(); va3 = V.get()
        A('v_lshrrev_b32 %s, 4, v0' % v(vq4))
        A('v_and_b32 %s, 7, v0' % v(t0))
        A('v_xor_b32 %s, %s, %s' % (v(vswz), v(t0), v(vq4)))
        A('v_lshlrev_b32 %s, 4, %s' % (v(vswz), v(vswz)))
        A('v_lshrrev_b32 %s, 3, v0' % v(va3))
        A('v_and_b32 %s, 32, v0' % v(t1))
        A('v_lshlrev_b32 %s, 9, %s' % (v(t1), v(t1)))
        A('v_and_b32 %s, 8, v0' % v(t2))
        A('v_lshl_add_u32 %s, %s, 10, %s' % (v(t2), v(t2), v(t1)))
        A('v_and_b32 %s, 16, v0' % v(t3))
        A('v_lshl_add_u32 %s, %s, 6, %s' % (v(t2), v(t3), v(t2)))
        A('v_add_u32 %s, %s, %s' % (v(XD), v(t2), v(vswz)))
        A('v_xor_b32 %s, 64, %s' % (v(XD + 1), v(XD)))
        A('v_add_u32 %s, 2048, %s' % (v(XD + 2), v(XD)))
        A('v_add_u32 %s, 3072, %s' % (v(XD + 3), v(XD + 1)))
        A('v_add_u32 %s, 1024, %s' % (v(XD + 1), v(XD + 1)))
        vswz2 = V.get()
        A('v_lshlrev_b32 %s, 2, %s' % (v(t3), v(t3)))
        A('v_lshlrev_b32 %s, 4, %s' % (v(t0), v(t0)))
        A('v_xor_b32 %s, %s, %s' % (v(vswz2), v(t0), v(t3)))
        if S:
            A('v_lshrrev_b32 %s, 1, %s' % (v(t1), v(t1)))
            A('v_and_b32 %s, 3, %s' % (v(t2), v(va3)))
            A('v_lshl_add_u32 %s, %s, 10, %s' % (v(t1), v(t2), v(t1)))
            A('v_add_u32 %s, %s, %s' % (v(WD), v(t1), v(vswz)))
            A('v_xor_b32 %s, 64, %s' % (v(WD + 1), v(WD)))
            A('v_add_u32 %s, %d, %s' % (v(WD + 2), 14 * 1024, v(WD)))
            A('v_add_u32 %s, %d, %s' % (v(WD + 3), 17 * 1024, v(WD + 1)))
            A('v_add_u32 %s, %d, %s' % (v(WD + 1), 3 * 1024, v(WD + 1)))
        else:
            A('v_mul_u32_u24 %s, 3072, %s' % (v(t1), v(va3)))
            A('v_add_u32 %s, %s, %s' % (v(WD), v(t1), v(vswz2)))
            for j in range(1, 4):
                A('v_add_u32 %s, %d, %s' % (v(WD + j), j * (8 * 3072 - 1024), v(WD)))
        rot = o.get('rot', 0)
        if rot:
            A('s_lshl_b32 %s, %s, 1' % (s(s_rot), s(s_g)))
            A('s_add_u32 %s, %s, %s' % (s(s_rot), s(s_rot), s(s_b)))
            A('s_add_u32 %s, %s, %d' % (s(s_rot), s(s_rot), ty))
            A('s_and_b32 %s, %s, 7' % (s(s_rot), s(s_rot)))
        else:
            A('s_mov_b32 %s, 0' % s(s_rot))
        A('s_lshl_b32 %s, %s, 17' % (s(s_xb), s(s_b)))
        A('s_lshl_b32 %s, %s, 15' % (s(s_t0), s(s_w)))
        A('s_add_u32 %s, %s, %s' % (s(s_xb), s(s_xb), s(s_t0)))
        A('s_lshl_b32 %s, %s, 12' % (s(s_m0x), s(s_w)))
        A('s_add_u32 %s, %s, %d' % (s(s_m0w), s(s_m0x), WR))
        A('s_and_b32 %s, %s, 1' % (s(s_t1), s(s_w)))
        A('s_lshr_b32 %s, %s, 1' % (s(s_t2), s(s_w)))
        if S:
            A('s_lshl_b32 %s, %s, 16' % (s(s_wb), s(s_g)))
            A('s_lshl_b32 %s, %s, 15' % (s(s_t0), s(s_t1)))
            A('s_add_u32 %s, %s, %s' % (s(s_wb), s(s_wb), s(s_t0)))
        else:
            A('s_mul_i32 %s, %s, %d' % (s(s_wb), s(s_t1), 32 * 3072))
            A('s_lshl_b32 %s, %s, 10' % (s(s_t0), s(s_t2)))
            A('s_add_u32 %s, %s, %s' % (s(s_wb), s(s_wb), s(s_t0)))
            A('s_lshl_b32 %s, %s, 7' % (s(s_t0), s(s_g)))
            A('s_add_u32 %s, %s, %s' % (s(s_wb), s(s_wb), s(s_t0)))
            A('s_add_u32 %s, %s, 1024' % (s(s_wb), s(s_wb)))
        A('s_cmp_lg_u32 %s, 0' % s(s_t1))
        A('s_cselect_b64 %s, -1, 0' % s(s_cs, 2))
        A('s_cmp_lg_u32 %s, 0' % s(s_t2))
        A('s_cselect_b64 %s, -1, 0' % s(s_tw, 2))
        for r, nb in ((rX, 0x200000), (rW, 0x80000 if S else 0x180000)):
            A('s_mov_b32 %s, 0x%x' % (s(r + 2), nb))
            A('s_mov_b32 %s, 0x20000' % s(r + 3))
        A('s_waitcnt lgkmcnt(0)')
        A('s_mov_b64 %s, %s' % (s(rX, 2), s(sX, 2)))
        if S:
            A('s_cselect_b64 %s, %s, %s' % (s(rW, 2), s(sBim, 2), s(sBre, 2)))
        else:
            A('s_mov_b64 %s, %s' % (s(rW, 2), s(sWqkv, 2)))

        def slice_setup(Q, sl):
            Q('s_add_u32 %s, %s, %d' % (s(s_tmpA), s(s_rot), sl))
            Q('s_and_b32 %s, %s, 7' % (s(s_tmpA), s(s_tmpA)))
            Q('s_lshl_b32 %s, %s, 7' % (s(s_tmpB), s(s_tmpA)))
            Q('s_add_u32 %s, %s, %s' % (s(s_sx), s(s_xb), s(s_tmpB)))
            if not S:
                Q('s_mul_i32 %s, %s, %d' % (s(s_tmpB), s(s_tmpA), 64 * 3072))
            Q('s_add_u32 %s, %s, %s' % (s(s_sw), s(s_wb), s(s_tmpB)))

        def slice_dmas(sl):
            G = []
            for part in range(2):
                for j in range(4):
                    q = Seq()
                    if part == 0 and j == 0:
                        slice_setup(q, sl)
                    if j == 0:
                        q('s_add_u32 m0, %s, %d' % (s(s_m0x if part == 0 else s_m0w), (sl % 4) * 16384))
                    q('buffer_load_dwordx4 %s, %s, %s offen offset:%d lds' % (
                        v((XD if part == 0 else WD) + j), srd(rX if part == 0 else rW), s(s_sx if part == 0 else s_sw), 1024 * j), 'sl%d' % sl)
                    G.append(q)
            return G

        for q in slice_dmas(0):
            A.seq(q)
        A('s_lshl_b32 %s, %s, 11' % (s(s_t0), s(s_g)))
        A('s_lshl_b32 %s, %s, 10' % (s(s_tmpA), s(s_w)))
        A('s_add_u32 %s, %s, %s' % (s(s_t0), s(s_t0), s(s_tmpA)))
        A('s_add_u32 %s, %s, %d' % (s(s_tmpA), s(s_tmpA), L_PHI))
        A('s_cmp_lg_u32 %s, 0' % s(s_t2))
        A('s_cselect_b64 %s, %s, %s' % (s(rC0, 2), s(sGate, 2), s(sWphi, 2)))
        A('s_cselect_b32 %s, 0, %s' % (s(s_t0), s(s_t0)))
        A('s_cselect_b32 m0, %d, %s' % (L_GATE, s(s_tmpA)))
        A('s_cselect_b32 %s, %s, 0' % (s(s_tmpA), s(s_rot)))
        A('s_mov_b32 %s, 0x4000' % s(rC0 + 2))
        A('s_mov_b32 %s, 0x20000' % s(rC0 + 3))
        vl16 = V.get()
        A('v_lshlrev_b32 %s, 4, v0' % v(vl16))
        A('s_lshl_b32 %s, %s, 7' % (s(s_tmpA), s(s_tmpA)))
        A('v_add_u32 %s, %s, %s' % (v(t0), s(s_tmpA), v(vl16)))
        A('v_and_b32 %s, 1023, %s' % (v(t0), v(t0)))
        A('buffer_load_dwordx4 %s, %s, %s offen lds' % (v(t0), srd(rC0), s(s_t0)), 'sl0')
        MK = V.get(4, 2)
        for i in range(4):
            A('v_mov_b32 %s, -1' % v(MK + i))
        A('s_mov_b64 %s, %s' % (s(rWS, 2), s(sWs, 2)))
        A('s_mov_b32 %s, 0x%x' % (s(rWS + 2), WS_END))
        A('s_mov_b32 %s, 0x20000' % s(rWS + 3))
        A('s_lshl_b32 %s, s2, 12' % s(s_t0))
        A('s_lshl_b32 %s, %s, 10' % (s(s_tmpA), s(s_w)))
        A('s_add_u32 %s, %s, %s' % (s(s_t0), s(s_t0), s(s_tmpA)))
        A('s_add_u32 %s, %s, 0x%x' % (s(s_t0), s(s_t0), KVP))
        A('buffer_store_dwordx4 %s, %s, %s, %s offen sc1' % (v(MK, 4), v(vl16), srd(rWS), s(s_t0)), 'clr1')
        vn = V.get()
        vhh = V.get()
        A('v_and_b32 %s, 31, v0' % v(vn))
        A('v_lshrrev_b32 %s, 5, v0' % v(vhh))
        vsw23 = V.get()
        A('v_and_b32 %s, 0x13, v0' % v(t0))
        A('v_and_b32 %s, 4, v0' % v(t1))
        A('v_lshl_add_u32 %s, %s, 1, %s' % (v(t0), v(t1), v(t0)))
        A('v_bfe_u32 %s, v0, 3, 1' % v(t1))
        A('v_lshl_add_u32 %s, %s, 2, %s' % (v(vsw23), v(t1), v(t0)))
        if S:
            PL = V.get(4, 2)
            A('s_lshl_b32 %s, %s, 7' % (s(s_t0), s(s_g)))
            A('s_lshl_b32 %s, %s, 6' % (s(s_tmpA), s(s_t1)))
            A('s_add_u32 %s, %s, %s' % (s(s_t0), s(s_t0), s(s_tmpA)))
            A('v_lshl_add_u32 %s, %s, 1, %s' % (v(t0), v(vsw23), s(s_t0)))
            A('global_load_ushort %s, %s, %s' % (v(PL), v(t0), s(sLre, 2)), 'par')
            A('global_load_ushort %s, %s, %s' % (v(PL + 1), v(t0), s(sLim, 2)), 'par')
            A('global_load_ushort %s, %s, %s' % (v(PL + 2), v(t0), s(sLdt, 2)), 'par')
        for q in slice_dmas(1):
            A.seq(q)
        AX0 = V.get(4); AX1 = V.get(4); AC = V.get(4)
        A('v_bfe_u32 %s, v0, 1, 3' % v(t0))
        A('v_xor_b32 %s, %s, %s' % (v(t0), v(t0), v(vhh)))
        A('v_lshlrev_b32 %s, 4, %s' % (v(t0), v(t0)))
        A('v_lshl_add_u32 %s, %s, 7, %s' % (v(t0), v(vn), v(t0)))
        A('s_mul_i32 %s, %s, 24576' % (s(s_w2), s(s_w)))
        A('s_add_u32 %s, %s, %d' % (s(s_w2), s(s_w2), W2A))
        if S:
            AW = V.get(4)
            A('s_lshl_b32 %s, %s, 12' % (s(s_t0), s(s_t1)))
            A('s_add_u32 %s, %s, %d' % (s(s_t0), s(s_t0), WR))
        for k in range(4):
            A('v_xor_b32 %s, %d, %s' % (v(t1), k << 5, v(t0)))
            A('v_add_u32 %s, %s, %s' % (v(AX0 + k), s(s_m0x), v(t1)))
            A('v_xor_b32 %s, 0x1000, %s' % (v(AX1 + k), v(AX0 + k)))
            A('v_add_u32 %s, %s, %s' % (v(AC + k), s(s_w2), v(t1)))
            if S:
                A('v_add_u32 %s, %s, %s' % (v(AW + k), s(s_t0), v(t1)))
        AO = V.get(2); AQ = V.get(); AG = V.get(); APH = V.get()
        A('v_bfe_u32 %s, v0, 2, 2' % v(t0))
        A('v_lshl_add_u32 %s, %s, 3, %s' % (v(t1), v(vhh), v(t0)))
        A('v_and_b32 %s, 3, v0' % v(t2))
        A('v_lshlrev_b32 %s, 3, %s' % (v(t2), v(t2)))
        A('v_and_b32 %s, 16, v0' % v(t3))
        A('v_lshl_add_u32 %s, %s, 1, %s' % (v(t2), v(t3), v(t2)))
        A('v_lshl_add_u32 %s, %s, 6, %s' % (v(AQ), v(t1), v(t2)))
        A('v_lshl_add_u32 %s, %s, 7, %s' % (v(t1), v(t1), v(t2)))
        A('v_and_b32 %s, 8, v0' % v(t2))
        A('v_lshlrev_b32 %s, 3, %s' % (v(t2), v(t2)))
        A('v_xor_b32 %s, %s, %s' % (v(t1), v(t1), v(t2)))
        A('v_add_u32 %s, %s, %s' % (v(AO), s(s_w2), v(t1)))
        A('v_xor_b32 %s, 64, %s' % (v(AO + 1), v(AO)))
        if not S:
            AW = V.get()
            A('s_lshl_b32 %s, %s, 6' % (s(s_t0), s(s_t1)))
            A('s_lshl_b32 %s, %s, 5' % (s(s_tmpA), s(s_t2)))
            A('s_add_u32 %s, %s, %s' % (s(s_t0), s(s_t0), s(s_tmpA)))
            A('s_add_u32 %s, %s, %d' % (s(s_t0), s(s_t0), WR))
            A('v_xor_b32 %s, %s, %s' % (v(AW), s(s_t0), v(t1)))
        A('s_mov_b32 %s, %d' % (s(s_t0), AUX))
        A('v_lshl_add_u32 %s, %s, 4, %s' % (v(AG), v(vhh), s(s_t0)))
        A('v_lshl_add_u32 %s, %s, 2, %s' % (v(t0), v(vhh), v(t0)))
        A('v_lshl_add_u32 %s, %s, 5, %s' % (v(t0), v(t0), v(t3)))
        A('v_and_b32 %s, 2, v0' % v(t2))
        A('v_lshl_add_u32 %s, %s, 2, %s' % (v(t0), v(t2), v(t0)))
        A('v_add_u32 %s, %d, %s' % (v(APH), L_PHI, v(t0)))
        QD = V.get()
        A('v_lshrrev_b32 %s, 2, v0' % v(t0))
        A('v_mul_u32_u24 %s, 3072, %s' % (v(t0), v(t0)))
        A('v_and_b32 %s, 3, v0' % v(t1))
        A('v_lshl_add_u32 %s, %s, 4, %s' % (v(QD), v(t1), v(t0)))
        A('s_mul_i32 %s, %s, %d' % (s(s_qb), s(s_w), 16 * 3072))
        A('s_lshl_b32 %s, %s, 7' % (s(s_t0), s(s_g)))
        A('s_add_u32 %s, %s, %s' % (s(s_qb), s(s_qb), s(s_t0)))
        if S:
            A('s_add_u32 %s, %s, 64' % (s(s_qb), s(s_qb)))
        A('s_mov_b64 %s, %s' % (s(rQ, 2), s(sWqkv, 2)))
        A('s_mov_b32 %s, 0x180000' % s(rQ + 2))
        A('s_mov_b32 %s, 0x20000' % s(rQ + 3))
        CD = V.get(4); OD = V.get(4)
        A('v_lshl_add_u32 %s, %s, 10, %s' % (v(CD), v(va3), v(vswz)))
        A('v_xor_b32 %s, 64, %s' % (v(t0), v(CD)))
        A('v_add_u32 %s, 7168, %s' % (v(CD + 1), v(t0)))
        A('v_add_u32 %s, %d, %s' % (v(CD + 2), 2 * 7168, v(CD)))
        A('v_add_u32 %s, %d, %s' % (v(CD + 3), 3 * 7168, v(t0)))
        A('v_lshl_add_u32 %s, %s, 10, %s' % (v(OD), v(va3), v(vswz2)))
        for j in range(1, 4):
            A('v_add_u32 %s, %d, %s' % (v(OD + j), j * 7168, v(OD)))
        SEL = V.get(8, 2)
        A('v_bfe_u32 %s, v0, 3, 2' % v(t0))
        A('v_bfe_u32 %s, v0, 1, 1' % v(t1))
        A('v_lshl_add_u32 %s, %s, 1, %s' % (v(t0), v(t0), v(t1)))
        A('v_bfe_u32 %s, v0, 2, 1' % v(t1))
        A('v_xor_b32 %s, %s, %s' % (v(t2), v(t1), v(vhh)))
        A('v_lshl_add_u32 %s, %s, 3, %s' % (v(t0), v(t2), v(t0)))
        A('v_and_b32 %s, 1, v0' % v(t2))
        A('v_lshlrev_b32 %s, 4, %s' % (v(t2), v(t2)))
        A('v_mov_b32 %s, 0x3f80' % v(t3))
        A('v_lshlrev_b32 %s, %s, %s' % (v(t3), v(t2), v(t3)))
        for i in range(8):
            A('v_cmp_eq_u32 vcc, %d, %s' % (i, v(t0)))
            A('v_cndmask_b32 %s, 0, %s, vcc' % (v(SEL + i), v(t3)))
        vNEG = V.get()
        A('s_mov_b32 %s, 0x80008000' % s(s_t0))
        A('v_mul_lo_u32 %s, %s, %s' % (v(vNEG), v(t1), s(s_t0)))
        A('s_mov_b32 %s, 0x%x' % (s(s_l2e), LOG2E))
        A('s_mov_b32 %s, 0x%x' % (s(s_l2e + 1), LOG2E))
        A('s_mov_b32 %s, %d' % (s(s_spin), o.get('spin', 200000)))
        A('s_and_b32 %s, s2, 7' % s(s_t0))
        A('s_bfe_u32 %s, s2, 0x20003' % s(s_tmpA))
        A('s_lshl_b32 %s, %s, 2' % (s(s_t0), s(s_t0)))
        A('s_add_u32 %s, %s, %s' % (s(s_tt), s(s_t0), s(s_tmpA)))
        A('s_lshr_b32 %s, s2, 5' % s(s_ct))
        for r, p in ((rC1, sCim), (rO, sWo)):
            A('s_mov_b64 %s, %s' % (s(r, 2), s(p, 2)))
            A('s_mov_b32 %s, 0x80000' % s(r + 2))
            A('s_mov_b32 %s, 0x20000' % s(r + 3))
        A('s_mov_b64 %s, %s' % (s(rOUT, 2), s(sOut, 2)))
        A('s_mov_b32 %s, 0x400000' % s(rOUT + 2))
        A('s_mov_b32 %s, 0x20000' % s(rOUT + 3))
        A('s_lshl_b32 %s, %s, 1' % (s(s_t0), s(s_b)))
        A('s_add_u32 %s, %s, %s' % (s(s_t0), s(s_t0), s(s_t2)))
        A('s_mul_i32 %s, %s, 196608' % (s(s_act), s(s_t0)))
        A('s_mul_i32 %s, %s, 12288' % (s(s_t0), s(s_g)))
        A('s_add_u32 %s, %s, %s' % (s(s_act), s(s_act), s(s_t0)))
        V.put(vq4); V.put(vswz); V.put(va3); V.put(vswz2)

        par = Seq()
        if S:
            LAM = V.get(16, 2)
            L16 = V.get(2, 2); L32 = V.get(2, 2); L64 = V.get(2, 2); CO = V.get(2, 2)
            WJ = V.get(16, 2)
            u = V.get(6, 2)
            P = par
            P.vwait('par')
            for i in range(3):
                P('v_lshlrev_b32 %s, 16, %s' % (v(PL + i), v(PL + i)))
            P('v_mul_f32 %s, %s, %s' % (v(u), s(s_l2e), v(PL + 2)))
            P('v_exp_f32 %s, %s' % (v(u), v(u)))
            P('v_cvt_pk_bf16_f32 %s, %s, %s' % (v(u), v(u), v(u)))
            P('v_lshlrev_b32 %s, 16, %s' % (v(u), v(u)))
            P('v_pk_mul_f32 %s, %s, %s %s' % (v(u + 2, 2), v(u, 2), v(PL, 2), BLO2))
            P('v_mul_f32 %s, %s, %s' % (v(u + 2), s(s_l2e), v(u + 2)))
            P('v_mul_f32 %s, 0.15915494, %s' % (v(u + 3), v(u + 3)))
            P('v_exp_f32 %s, %s' % (v(u), v(u + 2)))
            P('v_rndne_f32 %s, %s' % (v(u + 1), v(u + 3)))
            P('v_sub_f32 %s, %s, %s' % (v(u + 3), v(u + 3), v(u + 1)))
            P('v_cos_f32 %s, %s' % (v(u + 4), v(u + 3)))
            P('v_sin_f32 %s, %s' % (v(u + 5), v(u + 3)))
            P('v_mul_f32 %s, %s, %s' % (v(u + 2), v(PL), v(PL)))
            P('v_pk_mul_f32 %s, %s, %s %s' % (v(LAM, 2), v(u, 2), v(u + 4, 2), BLO2))
            P('v_fmac_f32 %s, %s, %s' % (v(u + 2), v(PL + 1), v(PL + 1)))
            P('v_rcp_f32 %s, %s' % (v(u + 2), v(u + 2)))
            P('v_add_f32 %s, -1.0, %s' % (v(u), v(LAM)))
            P('v_mov_b32 %s, %s' % (v(u + 1), v(LAM + 1)))
            P('v_xor_b32 %s, 0x80000000, %s' % (v(PL + 1), v(PL + 1)))
            P('v_add_f32 %s, %s, %s' % (v(u + 2), v(u + 2), v(u + 2)))
            cmul(P, u + 4, u, PL)
            P('v_pk_mul_f32 %s, %s, %s %s' % (v(CO, 2), v(u + 2, 2), v(u + 4, 2), BLO2))
            for k in range(1, 8):
                cmul(P, LAM + 2 * k, LAM + 2 * (k - 1), LAM)
            cmul(P, L16, LAM + 14, LAM + 14)
            cmul(P, L32, L16, L16)
            cmul(P, L64, L32, L32)
            cmul(P, u, L64, L64)
            cmul(P, u + 2, u, u)
            P('v_cmp_ne_u32 vcc, 0, %s' % v(vhh))
            P('v_cndmask_b32 %s, 1.0, %s, vcc' % (v(WJ), v(u)))
            P('v_cndmask_b32 %s, 0, %s, vcc' % (v(WJ + 1), v(u + 1)))
            for k in range(1, 8):
                cmul(P, WJ + 2 * k, WJ + 2 * (k - 1), u + 2)

        ACC = V.get(64, 4)
        STG = 128; GACC = 160

        def reads(k):
            q = Seq()
            sl, ks = divmod(k, 4); slot = (sl % 4) * 16384; st = STG + 16 * (k & 1)
            tg = 'r%d' % k
            q('ds_read_b128 %s, %s offset:%d' % (ag(4 * k, 4), v(AX0 + ks), slot), tg)
            if S:
                q('ds_read_b128 %s, %s offset:%d' % (ag(st + 4, 4), v(AW + ks), slot), tg)
                q('ds_read_b128 %s, %s offset:%d' % (ag(st, 4), v(AX1 + ks), slot), tg)
                q('ds_read_b128 %s, %s offset:%d' % (ag(st + 8, 4), v(AW + ks), slot + 8192), tg)
            else:
                for uu in range(2):
                    q('ds_read_b64_tr_b16 %s, %s offset:%d' % (ag(st + 4 + 2 * uu, 2), v(AW), slot + (16 * ks + 4 * uu) * 128), tg)
                q('ds_read_b128 %s, %s offset:%d' % (ag(st, 4), v(AX1 + ks), slot), tg)
                for uu in range(2):
                    q('ds_read_b64_tr_b16 %s, %s offset:%d' % (ag(st + 8 + 2 * uu, 2), v(AW), slot + 8192 + (16 * ks + 4 * uu) * 128), tg)
            q('ds_read_b128 %s, %s offset:%d' % (ag(st + 12, 4), v(AG), 32 * k), tg)
            return q

        def mf(k):
            q = Seq()
            st = STG + 16 * (k & 1)
            x0 = ag(4 * k, 4); x1 = ag(st, 4); w0 = ag(st + 4, 4); w1 = ag(st + 8, 4)
            def c(r, n=16, f=v):
                return f(r, n) if k else '0'
            if S:
                mfma(q, v(ACC, 16), x0, w0, c(ACC))
                mfma(q, v(ACC + 16, 16), x1, w0, c(ACC + 16))
            else:
                mfma(q, v(ACC, 16), w0, x0, c(ACC))
                mfma(q, v(ACC + 16, 16), w0, x1, c(ACC + 16))
            mfma(q, v(ACC + 32, 16), x0, w1, c(ACC + 32))
            mfma(q, v(ACC + 48, 16), x1, w1, c(ACC + 48))
            mfma(q, ag(GACC, 16), ag(st + 12, 4), x0, c(GACC, 16, ag))
            return q

        def wq_dma(sl):
            q = Seq()
            q('s_add_u32 %s, %s, %d' % (s(s_tmpA), s(s_rot), sl))
            q('s_and_b32 %s, %s, 7' % (s(s_tmpA), s(s_tmpA)))
            q('s_mul_i32 %s, %s, %d' % (s(s_tmpA), s(s_tmpA), 64 * 3072))
            q('s_add_u32 %s, %s, %s' % (s(s_sw), s(s_qb), s(s_tmpA)))
            q('s_lshr_b32 %s, %s, 2' % (s(s_tmpA), s(s_m0x)))
            q('s_add_u32 m0, %s, %d' % (s(s_tmpA), sl * 4096))
            q('buffer_load_dwordx4 %s, %s, %s offen lds' % (v(QD), srd(rQ), s(s_sw)), 'wq')
            return q

        def clear2(j):
            q = Seq()
            q('s_mul_i32 %s, s2, 24576' % s(s_t0))
            q('s_mul_i32 %s, %s, 6144' % (s(s_tmpA), s(s_w)))
            q('s_add_u32 %s, %s, %s' % (s(s_t0), s(s_t0), s(s_tmpA)))
            q('s_add_u32 %s, %s, %d' % (s(s_t0), s(s_t0), 1024 * j))
            q('buffer_store_dwordx4 %s, %s, %s, %s offen sc1' % (v(MK, 4), v(vl16), srd(rWS), s(s_t0)), 'clr2')
            return q

        def arrive(which, limit):
            lab = 'L_%s_arr%d' % (T, which)
            A('s_cmp_eq_u32 %s, 0' % s(s_w))
            A('s_cbranch_scc0 %s' % lab)
            if limit < 256:
                A('s_cmp_lt_u32 s2, %d' % limit)
                A('s_cbranch_scc0 %s' % lab)
            A('s_and_b32 %s, s2, 1' % s(s_t0))
            A('s_lshl_b32 %s, %s, 7' % (s(s_t0), s(s_t0)))
            A('v_mov_b32 %s, %s' % (v(t0), s(s_t0)))
            A('v_mov_b32 %s, 1' % v(t1))
            A('s_mov_b64 exec, 1')
            self.raw('global_atomic_add %s, %s, %s offset:%d sc1' % (v(t0), v(t1), s(sDbg, 2), 4 * which))
            A('s_mov_b64 exec, -1')
            A(lab + ':')

        vCNT = V.get(); vCA = V.get()
        A('v_and_b32 %s, 1, v0' % v(vCA))
        A('v_lshlrev_b32 %s, 7, %s' % (v(vCA), v(vCA)))

        def cnt_load(Q, which):
            Q('global_load_dword %s, %s, %s offset:%d sc1' % (v(vCNT), v(vCA), s(sDbg, 2), 4 * which), 'cnt')

        def cnt_check(which, val):
            lab = 'L_%s_cnt%d' % (T, which)
            A.vwait('cnt')
            A(lab + ':')
            A('v_cmp_gt_u32 vcc, %d, %s' % (val, v(vCNT)))
            A('s_cbranch_vccnz %s_r' % lab)
            A(lab + '_d:')
            self.tail.append('\n'.join([
                lab + '_r:',
                spin(lab),
                's_sleep 4',
                'global_load_dword %s, %s, %s offset:%d sc1' % (v(vCNT), v(vCA), s(sDbg, 2), 4 * which),
                's_waitcnt vmcnt(0)',
                's_branch %s' % lab]))

        self.stamp()
        A.vwait('sl0')
        A('s_barrier')
        self.stamp()
        A.seq(reads(0))
        parpos = 0
        for k in range(32):
            sl, ks = divmod(k, 4)
            if k < 31:
                if ks == 3:
                    if sl == 0:
                        A.vwait('sl1', 'clr1')
                    elif sl == 5:
                        A.vwait('sl6', 'clr2')
                    else:
                        A.vwait('sl%d' % (sl + 1))
                    A('s_barrier')
                    if sl == 0:
                        arrive(0, 162)
                    if sl == 5:
                        arrive(1, 256)
                A.seq(reads(k + 1))
            groups = []
            if sl < 6:
                if ks == 0:
                    cur = slice_dmas(sl + 2)
                groups = cur[2 * ks:2 * ks + 2]
                if 1 <= sl <= 3 and ks in (1, 3):
                    groups = groups + [clear2((sl - 1) * 2 + (ks >> 1))]
            else:
                groups = [wq_dma(k - 24)]
                if k == 27:
                    q = Seq(); cnt_load(q, 0); groups.append(q)
            A.lwait('r%d' % k)
            body = sprinkle(mf(k), groups, 0.2, 1.0)
            if S and k >= 4 and parpos < len(par):
                n = 6
                body = weave(body, par[parpos:parpos + n]); parpos += n
            A.seq(body)
        assert parpos >= len(par)
        if S:
            V.put(u, 6); V.put(PL, 4)
        V.put(XD, 4); V.put(WD, 4); V.put(AX0, 4); V.put(AX1, 4); V.put(AG); V.put(QD); V.put(MK, 4)
        V.put(AW, 4 if S else 1)
        A('s_barrier')
        self.stamp()
        A('s_mov_b64 %s, %s' % (s(rC0, 2), s(sCre, 2)))
        A('s_mov_b32 %s, 0x80000' % s(rC0 + 2))

        def w2_dmas(p):
            G = []
            for j in range(8):
                q = Seq()
                if j % 4 == 0:
                    if p < 4:
                        q('s_lshl_b32 %s, %s, 16' % (s(s_sx), s(s_ct)))
                        q('s_lshl_b32 %s, %s, 8' % (s(s_tmpA), s(s_w)))
                        q('s_add_u32 %s, %s, %s' % (s(s_sx), s(s_sx), s(s_tmpA)))
                        q('s_add_u32 %s, %s, %d' % (s(s_sx), s(s_sx), (j >> 2) * 32768 + 128 * (p >> 1)))
                    else:
                        q('s_lshl_b32 %s, %s, 17' % (s(s_sx), s(s_w)))
                        q('s_lshl_b32 %s, %s, 7' % (s(s_tmpA), s(s_ct)))
                        q('s_add_u32 %s, %s, %s' % (s(s_sx), s(s_sx), s(s_tmpA)))
                        q('s_add_u32 %s, %s, %d' % (s(s_sx), s(s_sx), (j >> 2) * 32768 + 65536 * (p - 4)))
                    q('s_add_u32 m0, %s, %d' % (s(s_w2), (p % 3) * 8192 + (j >> 2) * 4096))
                r = (rC0, rC1, rC0, rC1, rO, rO)[p]
                q('buffer_load_dwordx4 %s, %s, %s offen offset:%d lds' % (v((CD if p < 4 else OD) + (j & 3)), srd(r), s(s_sx), 1024 * (j & 3)), 'w2_%d' % p)
                G.append(q)
            return G

        def w2reg(p, c2, ks):
            return (160 + 32 * p if p < 3 else 32 * (p - 3)) + (c2 * 4 + ks) * 4

        def w2_fetch(p):
            A.vwait('w2_%d' % p)
            for c2 in range(2):
                for ks in range(4):
                    r = w2reg(p, c2, ks)
                    if p < 4:
                        A('ds_read_b128 %s, %s offset:%d' % (ag(r, 4), v(AC + ks), (p % 3) * 8192 + c2 * 4096), 'w2r')
                    else:
                        for uu in range(2):
                            A('ds_read_b64_tr_b16 %s, %s offset:%d' % (ag(r + 2 * uu, 2), v(AO + c2), (p % 3) * 8192 + (16 * ks + 4 * uu) * 128), 'w2r')
            A.lwait('w2r')

        vG = V.get(); vOMG = V.get()
        A('v_accvgpr_read_b32 %s, %s' % (v(vG), ag(GACC)))
        A('v_mul_f32 %s, %s, %s' % (v(vG), s(s_l2e), v(vG)))
        A('v_exp_f32 %s, -%s' % (v(vG), v(vG)))
        A('v_add_f32 %s, 1.0, %s' % (v(vG), v(vG)))
        A('v_rcp_f32 %s, %s' % (v(vG), v(vG)))
        A('v_sub_f32 %s, 1.0, %s' % (v(vOMG), v(vG)))

        def phi_frags(Q, dst, base_imm, xor_s=None):
            for e in range(2):
                a = APH
                if xor_s is not None:
                    a = t0 + e
                    Q('v_add_u32 %s, %s, %s' % (v(a), s(xor_s + e), v(APH)))
                for uu in range(2):
                    Q('ds_read_b64_tr_b16 %s, %s offset:%d' % (v(dst + 4 * e + 2 * uu, 2), v(a), (base_imm + 512 * e if xor_s is None else 0) + 256 * uu), 'ph')
            Q.lwait('ph')
            for i in range(8):
                Q('v_xor_b32 %s, %s, %s' % (v(dst + i), v(vNEG), v(dst + i)))

        def softmax(P, F, tm):
            q = Seq()
            q('v_max3_f32 %s, %s, %s, %s' % (v(tm), v(P), v(P + 1), v(P + 2)))
            q('v_max3_f32 %s, %s, %s, %s' % (v(tm + 1), v(P + 3), v(P + 4), v(P + 5)))
            for i in range(6, 14, 4):
                q('v_max3_f32 %s, %s, %s, %s' % (v(tm), v(tm), v(P + i), v(P + i + 1)))
                q('v_max3_f32 %s, %s, %s, %s' % (v(tm + 1), v(tm + 1), v(P + i + 2), v(P + i + 3)))
            q('v_max3_f32 %s, %s, %s, %s' % (v(tm), v(tm), v(P + 14), v(P + 15)))
            q('v_max_f32 %s, %s, %s' % (v(tm), v(tm), v(tm + 1)))
            q('v_mul_f32 %s, %s, %s' % (v(tm), s(s_l2e), v(tm)))
            for i in range(0, 16, 2):
                q('v_pk_fma_f32 %s, %s, %s, %s op_sel_hi:[1,1,0] neg_lo:[0,0,1] neg_hi:[0,0,1]' % (v(P + i, 2), v(P + i, 2), s(s_l2e, 2), v(tm, 2)))
            for i in range(16):
                q('v_exp_f32 %s, %s' % (v(P + i), v(P + i)))
            q('v_pk_add_f32 %s, %s, %s' % (v(tm, 2), v(P, 2), v(P + 2, 2)))
            q('v_pk_add_f32 %s, %s, %s' % (v(tm + 2, 2), v(P + 4, 2), v(P + 6, 2)))
            for i in (8, 12):
                q('v_pk_add_f32 %s, %s, %s' % (v(tm, 2), v(tm, 2), v(P + i, 2)))
                q('v_pk_add_f32 %s, %s, %s' % (v(tm + 2, 2), v(tm + 2, 2), v(P + i + 2, 2)))
            q('v_pk_add_f32 %s, %s, %s' % (v(tm, 2), v(tm, 2), v(tm + 2, 2)))
            q('v_add_f32 %s, %s, %s' % (v(tm), v(tm), v(tm + 1)))
            q('v_rcp_f32 %s, %s' % (v(tm), v(tm)))
            for i in range(0, 16, 2):
                q('v_pk_mul_f32 %s, %s, %s %s' % (v(P + i, 2), v(tm, 2), v(P + i, 2), BLO2))
            for i in range(8):
                q('v_cvt_pk_bf16_f32 %s, %s, %s' % (v(F + i), v(P + 2 * i), v(P + 2 * i + 1)))
            return q

        def pack(Q, dst, src, n):
            for i in range(n):
                Q('v_cvt_pk_bf16_f32 %s, %s, %s' % (v(dst + i), v(src + 2 * i), v(src + 2 * i + 1)))

        if S:
            RE = [ACC, ACC + 16]; IM = [ACC + 32, ACC + 48]
            for st in range(1, 8):
                for (d, a, m) in ((RE, RE, BLO), (IM, IM, BLO), (RE, IM, BHI + ' ' + NEG0), (IM, RE, BHI)):
                    for t in range(2):
                        A('v_pk_fma_f32 %s, %s, %s, %s %s' % (v(d[t] + 2 * st, 2), v(LAM, 2), v(a[t] + 2 * st - 2, 2), v(d[t] + 2 * st, 2), m))
            LO16 = V.get(4, 2); HI16 = V.get(4, 2); E32 = V.get(4, 2); FIRST = V.get(2, 2); SEC = V.get(2, 2); E64 = V.get(4, 2); EE = V.get(2, 2)
            l8r, l8i = LAM + 14, LAM + 15
            for t in range(2):
                A('v_fma_f32 %s, %s, %s, %s' % (v(LO16 + 2 * t), v(l8r), v(RE[t] + 14), v(RE[t] + 15)))
                A('v_fma_f32 %s, %s, %s, %s' % (v(LO16 + 2 * t + 1), v(l8r), v(IM[t] + 14), v(IM[t] + 15)))
            for t in range(2):
                A('v_fma_f32 %s, -%s, %s, %s' % (v(LO16 + 2 * t), v(l8i), v(IM[t] + 14), v(LO16 + 2 * t)))
                A('v_fma_f32 %s, %s, %s, %s' % (v(LO16 + 2 * t + 1), v(l8i), v(RE[t] + 14), v(LO16 + 2 * t + 1)))
            for i in range(4):
                A('v_mov_b32 %s, %s' % (v(HI16 + i), v(LO16 + i)))
            for i in range(4):
                A('v_permlane32_swap_b32 %s, %s' % (v(LO16 + i), v(HI16 + i)))
            for t in range(2):
                cmul(A, E32 + 2 * t, L16, LO16 + 2 * t, HI16 + 2 * t)
            for i in range(2):
                A('v_cndmask_b32 %s, %s, %s, %s' % (v(FIRST + i), v(E32 + i), v(E32 + 2 + i), s(s_cs, 2)))
                A('v_cndmask_b32 %s, %s, %s, %s' % (v(SEC + i), v(E32 + 2 + i), v(E32 + i), s(s_cs, 2)))
            cmul(A, EE, L32, FIRST, SEC)
            A('s_lshl_b32 %s, %s, 9' % (s(s_t0), s(s_t1)))
            A('s_add_u32 %s, %s, %d' % (s(s_t0), s(s_t0), L_S2))
            A('v_lshl_add_u32 %s, %s, 3, %s' % (v(t0), v(vn), s(s_t0)))
            A('s_lshl_b32 %s, %s, 8' % (s(s_t0), s(s_t2)))
            A('v_add_u32 %s, %s, %s' % (v(t1), s(s_t0), v(t0)))
            A('ds_write_b64 %s, %s' % (v(t1), v(EE, 2)), 's2w')
            A.lwait('s2w')
            A('s_barrier')
            A('ds_read_b64 %s, %s' % (v(E64, 2), v(t0)), 's2r')
            A('ds_read_b64 %s, %s offset:256' % (v(E64 + 2, 2), v(t0)), 's2r')
            A('s_lshl_b32 %s, %s, 1' % (s(s_t0), s(s_g)))
            A('s_add_u32 %s, %s, %s' % (s(s_t0), s(s_t0), s(s_t1)))
            A('s_lshl_b32 %s, %s, 12' % (s(s_t0), s(s_t0)))
            A('s_add_u32 %s, %s, 0x%x' % (s(s_t0), s(s_t0), EB))
            A('s_add_u32 %s, %s, %s' % (s(rE), s(sWs), s(s_t0)))
            A('s_addc_u32 %s, %s, 0' % (s(rE + 1), s(sWs + 1)))
            A('s_mov_b32 %s, 4096' % s(rE + 2))
            A('s_mov_b32 %s, 0x20000' % s(rE + 3))
            A('s_lshl_b32 %s, %s, 8' % (s(s_t0), s(s_b)))
            A('v_lshl_add_u32 %s, %s, 3, %s' % (v(t2), v(vn), s(s_t0)))
            cnt_check(0, 81)
            A.lwait('s2r')
            cmul(A, EE, L64, E64, E64 + 2)
            A('s_lshl_b32 %s, %s, 4' % (s(s_t0), s(s_t2)))
            A('s_lshl_b64 exec, 0xffff, %s' % s(s_t0))
            A('buffer_store_dwordx2 %s, %s, %s, 0 offen sc1' % (v(EE, 2), v(t2), srd(rE)), 'pubE')
            A('s_mov_b64 exec, -1')
            self.stamp()
            EA = V.get(8)
            A('v_lshlrev_b32 %s, 8, %s' % (v(t3), v(vhh)))
            A('v_sub_u32 %s, %s, %s' % (v(t2), v(t2), v(t3)))
            for j in range(8):
                A('v_subrev_u32 %s, %d, %s' % (v(EA + j), 256 + 512 * j, v(t2)))
                A('v_min_u32 %s, 0x10000, %s' % (v(EA + j), v(EA + j)))
            A('s_lshl_b32 %s, %s, 9' % (s(s_t0), s(s_b)))
            A('s_lshl_b32 %s, %s, 7' % (s(s_tmpA), s(s_w)))
            A('s_add_u32 %s, %s, %s' % (s(s_t0), s(s_t0), s(s_tmpA)))
            A('s_add_u32 %s, %s, 0x%x' % (s(s_t0), s(s_t0), GB))
            A('s_cmp_eq_u32 %s, 0' % s(s_g))
            A('s_cselect_b32 %s, %s, 0x700000' % (s(s_t0), s(s_t0)))
            A('v_lshlrev_b32 %s, 2, %s' % (v(t3), v(vn)))
            A('s_mov_b32 exec_hi, 0')
            A('buffer_store_dword %s, %s, %s, %s offen sc1' % (v(vG), v(t3), srd(rWS), s(s_t0)), 'pubG')
            A('s_mov_b64 exec, -1')
            sc = Seq(); tp = V.get(4, 2)
            for st in range(8):
                for t in range(2):
                    sc('v_pk_mul_f32 %s, %s, %s %s %s' % (v(tp + 2 * t, 2), v(CO, 2), v(RE[t] + 2 * st, 2), BHI2, NEG02))
                for t in range(2):
                    sc('v_pk_mul_f32 %s, %s, %s %s' % (v(RE[t] + 2 * st, 2), v(CO, 2), v(RE[t] + 2 * st, 2), BLO2))
                for t in range(2):
                    sc('v_pk_fma_f32 %s, %s, %s, %s %s %s' % (v(RE[t] + 2 * st, 2), v(CO, 2), v(IM[t] + 2 * st, 2), v(RE[t] + 2 * st, 2), BHI, NEG0))
                for t in range(2):
                    sc('v_pk_fma_f32 %s, %s, %s, %s %s %s' % (v(IM[t] + 2 * st, 2), v(CO, 2), v(IM[t] + 2 * st, 2), v(tp + 2 * t, 2), BLO, NEG0))
            A.seq(sc)
            V.put(tp, 4); V.put(HI16, 4); V.put(E32, 4); V.put(SEC, 2)
            q_groups = w2_dmas(0) + w2_dmas(1)
            sm_groups = w2_dmas(2)
        else:
            KT = [ACC, ACC + 16]; VT = [ACC + 32, ACC + 48]
            PH = V.get(8, 2)
            A('s_lshl_b32 %s, %s, 1' % (s(s_t0), s(s_t1)))
            A('s_add_u32 %s, %s, %s' % (s(s_t0), s(s_t0), s(s_t2)))
            A('s_lshl_b32 %s, %s, 9' % (s(s_sx), s(s_t0)))
            A('s_xor_b32 %s, %s, 512' % (s(s_sw), s(s_sx)))
            phi_frags(A, PH, 0, s_sx)
            KB = V.get(16, 2); VB = V.get(16, 2)
            for t in range(2):
                pack(A, KB + 8 * t, KT[t], 8)
            PP = [KT[0], KT[1], V.get(16, 4), V.get(16, 4)]
            FF = [V.get(8, 2) for _ in range(2)]
            TM = [V.get(4, 2) for _ in range(2)]
            VP = V.get(8, 2)
            KVA = [V.get(16, 4) for _ in range(2)]
            units = [(t, e) for t in range(2) for e in range(2)]
            for ui, (t, e) in enumerate(units):
                mfma(A, v(PP[ui], 16), v(PH + 4 * e, 4), v(KB + 8 * t + 4 * e, 4), '0')
            for t in range(2):
                pack(A, VB + 8 * t, VT[t], 8)
            vONE = V.get()
            A('v_mov_b32 %s, 0x3f803f80' % v(vONE))
            A('v_and_b32 %s, 16, v0' % v(t2))
            A('v_cmp_eq_u32 vcc, 0, %s' % v(t2))
            X = Seq()
            for t in range(2):
                X.extend(weave(softmax(PP[2 * t], FF[0], TM[0]), softmax(PP[2 * t + 1], FF[1], TM[1])))
                TT = [KB, VT[t]] if t == 0 else [PP[0], PP[1]]
                if t == 0:
                    TT = [VT[0], VT[1]]
                for e in range(2):
                    mfma(X, v(TT[e], 16), v(FF[e], 4), v(SEL, 4), '0')
                for e in range(2):
                    mfma(X, v(TT[e], 16), v(FF[e] + 4, 4), v(SEL + 4, 4), v(TT[e], 16))
                for e in range(2):
                    for i in range(8):
                        if e == 0:
                            X('v_cndmask_b32 %s, %s, %s, vcc' % (v(VP + i), v(vONE), v(VB + 8 * t + i)))
                        else:
                            X('v_cndmask_b32 %s, %s, %s, vcc' % (v(VB + 8 * t + i), v(VB + 8 * t + i), v(vONE)))
                for e in range(2):
                    pack(X, FF[e], TT[e], 8)
                for n in range(2):
                    for e in range(2):
                        bsrc = (VP if e == 0 else VB + 8 * t) + 4 * n
                        mfma(X, v(KVA[e], 16), v(FF[e] + 4 * n, 4), v(bsrc, 4), v(KVA[e], 16) if (t or n) else '0')
            A.seq(sprinkle(X, w2_dmas(0) + w2_dmas(1), 0.25, 1.0))
            A('s_add_u32 %s, %s, %d' % (s(s_t0), s(s_m0x), L_KVX))
            A('v_add_u32 %s, %s, %s' % (v(t0), s(s_t0), v(vl16)))
            A('v_xor_b32 %s, 0x2100, %s' % (v(t1), v(t0)))
            for i in range(4):
                A('ds_write_b128 %s, %s offset:%d' % (v(t0), v(KVA[1] + 4 * i, 4), 1024 * i), 'kx')
            A.lwait('kx')
            A('s_barrier')
            for i in range(4):
                A('ds_read_b128 %s, %s offset:%d' % (v(KVA[1] + 4 * i, 4), v(t1), 1024 * i), 'kr')
            A('v_lshlrev_b32 %s, 4, %s' % (v(t0), v(vn)))
            A('v_lshl_add_u32 %s, %s, 8, %s' % (v(t0), v(vhh), v(t0)))
            A('v_lshlrev_b32 %s, 4, %s' % (v(t2), v(vhh)))
            A('v_add_u32 %s, 1024, %s' % (v(t2), v(t2)))
            A('v_cndmask_b32 %s, %s, %s, vcc' % (v(t3), v(t2), v(t0)))
            A('v_add_u32 %s, 512, %s' % (v(t0), v(t0)))
            A('v_add_u32 %s, 32, %s' % (v(t2), v(t2)))
            A('v_cndmask_b32 %s, %s, %s, vcc' % (v(t2), v(t2), v(t0)))
            A('s_lshl_b32 %s, %s, 2' % (s(s_t0), s(s_g)))
            A('s_lshl_b32 %s, %s, 1' % (s(s_tmpA), s(s_t1)))
            A('s_add_u32 %s, %s, %s' % (s(s_t0), s(s_t0), s(s_tmpA)))
            A('s_add_u32 %s, %s, %s' % (s(s_t0), s(s_t0), s(s_t2)))
            A('s_lshl_b32 %s, %s, 4' % (s(s_t0), s(s_t0)))
            A('s_add_u32 %s, %s, %s' % (s(s_t0), s(s_t0), s(s_b)))
            A('s_mul_i32 %s, %s, 1152' % (s(s_t0), s(s_t0)))
            A('s_add_u32 %s, %s, 0x%x' % (s(s_t0), s(s_t0), KVP))
            cnt_check(0, 81)
            A.lwait('kr')
            for i in range(0, 16, 2):
                A('v_pk_add_f32 %s, %s, %s' % (v(KVA[0] + i, 2), v(KVA[0] + i, 2), v(KVA[1] + i, 2)))
            pack(A, FF[0], KVA[0], 8)
            A('s_mov_b32 exec_lo, 0x1ffff')
            A('s_mov_b32 exec_hi, 0x1ffff')
            A('buffer_store_dwordx4 %s, %s, %s, %s offen sc1' % (v(FF[0], 4), v(t3), srd(rWS), s(s_t0)), 'pubKV')
            A('buffer_store_dwordx4 %s, %s, %s, %s offen sc1' % (v(FF[0] + 4, 4), v(t2), srd(rWS), s(s_t0)), 'pubKV')
            A('s_mov_b64 exec, -1')
            self.stamp()
            V.put(PH, 8); V.put(KB, 16); V.put(VB, 16); V.put(PP[2], 16); V.put(PP[3], 16)
            V.put(FF[1], 8); V.put(TM[0], 4); V.put(TM[1], 4); V.put(VP, 8); V.put(KVA[0], 16); V.put(KVA[1], 16); V.put(vONE)
            V.put(ACC, 64)
            q_groups = w2_dmas(2)
            sm_groups = []

        A.vwait('wq')
        A('s_barrier')
        QA = V.get(16, 4); PH = V.get(8, 2)
        Q = Seq()
        def qreads(k):
            for uu in range(2):
                Q('ds_read_b64_tr_b16 %s, %s offset:%d' % (ag(STG + 4 * (k % 6) + 2 * uu, 2), v(AQ), 1024 * k + 256 * uu), 'q%d' % k)
        phi_frags(Q, PH, 1024 * ty)
        for k in range(5):
            qreads(k)
        for k in range(32):
            if k + 5 < 32:
                qreads(k + 5)
            Q.lwait('q%d' % k)
            mfma(Q, v(QA, 16), ag(STG + 4 * (k % 6), 4), ag(4 * k, 4), v(QA, 16) if k else '0')
        A.seq(sprinkle(Q, q_groups, 0.1, 1.0))
        if not S:
            V.put(FF[0], 8)
        QB = V.get(8, 2); FQ = [V.get(8, 2) for _ in range(2)]; TM = [V.get(4, 2) for _ in range(2)]
        PP = [QA, V.get(16, 4)]
        pack(A, QB, QA, 8)
        for e in range(2):
            mfma(A, v(PP[e], 16), v(PH + 4 * e, 4), v(QB + 4 * e, 4), '0')
        A.seq(sprinkle(weave(softmax(PP[0], FQ[0], TM[0]), softmax(PP[1], FQ[1], TM[1])), sm_groups, 0.0, 1.0))
        V.put(QB, 8); V.put(PH, 8); V.put(PP[0], 16); V.put(PP[1], 16); V.put(TM[0], 4); V.put(TM[1], 4)
        V.put(AQ); V.put(APH); V.put(vNEG)
        cnt_load(A, 1)
        self.stamp()

        if S:
            EV = V.get(16, 2); CA = V.get(4, 2); CB = V.get(4, 2)
            lab = 'L_S_e'
            A(lab + ':')
            for j in range(8):
                A('buffer_load_dwordx2 %s, %s, %s, 0 offen sc1' % (v(EV + 2 * j, 2), v(EA + j), srd(rE)), 'ev')
            A('s_waitcnt vmcnt(0)')
            A('v_max3_u32 %s, %s, %s, %s' % (v(t0), v(EV), v(EV + 1), v(EV + 2)))
            A('v_max3_u32 %s, %s, %s, %s' % (v(t1), v(EV + 3), v(EV + 4), v(EV + 5)))
            for i in range(6, 14, 4):
                A('v_max3_u32 %s, %s, %s, %s' % (v(t0), v(t0), v(EV + i), v(EV + i + 1)))
                A('v_max3_u32 %s, %s, %s, %s' % (v(t1), v(t1), v(EV + i + 2), v(EV + i + 3)))
            A('v_max3_u32 %s, %s, %s, %s' % (v(t0), v(t0), v(EV + 14), v(EV + 15)))
            A('v_max_u32 %s, %s, %s' % (v(t0), v(t0), v(t1)))
            A('v_cmp_eq_u32 vcc, -1, %s' % v(t0))
            A('s_cbranch_vccnz %s_r' % lab)
            A(lab + '_d:')
            self.tail.append('\n'.join([lab + '_r:', spin(lab), 's_branch %s' % lab]))
            self.stamp()
            q0 = Seq(); q1 = Seq()
            for ch, q in ((0, q0), (1, q1)):
                for j in range(4):
                    jj = 2 * j + ch
                    cmul(q, CA + 2 * ch, WJ + 2 * jj, EV + 2 * jj, (CA + 2 * ch) if j else None)
            A.seq(weave(q0, q1))
            A('v_pk_add_f32 %s, %s, %s' % (v(CA, 2), v(CA, 2), v(CA + 2, 2)))
            for i in range(2):
                A('v_mov_b32 %s, %s' % (v(CA + 2 + i), v(CA + i)))
            for i in range(2):
                A('v_permlane32_swap_b32 %s, %s' % (v(CA + i), v(CA + 2 + i)))
            A('v_pk_add_f32 %s, %s, %s' % (v(CA, 2), v(CA, 2), v(CA + 2, 2)))
            cmul(A, CA + 2, L64, CA, E64)
            for i in range(2):
                A('v_cndmask_b32 %s, %s, %s, %s' % (v(CA + i), v(CA + i), v(CA + 2 + i), s(s_tw, 2)))
            cmul(A, CA + 2, L32, CA, FIRST)
            for i in range(2):
                A('v_cndmask_b32 %s, %s, %s, %s' % (v(CB + i), v(CA + i), v(CA + 2 + i), s(s_cs, 2)))
                A('v_cndmask_b32 %s, %s, %s, %s' % (v(CB + 2 + i), v(CA + 2 + i), v(CA + i), s(s_cs, 2)))
            A('v_cmp_ne_u32 vcc, 0, %s' % v(vhh))
            for t in range(2):
                cmul(A, CA + 2 * t, L16, CB + 2 * t, LO16 + 2 * t)
            for i in range(4):
                A('v_cndmask_b32 %s, %s, %s, vcc' % (v(CB + i), v(CB + i), v(CA + i)))
            CR = [EV, EV + 4]; CI = [EV + 2, EV + 6]
            for t in range(2):
                A('v_mul_f32 %s, %s, %s' % (v(CR[t]), v(CO), v(CB + 2 * t)))
                A('v_mul_f32 %s, %s, %s' % (v(CI[t]), v(CO), v(CB + 2 * t + 1)))
            for t in range(2):
                A('v_fma_f32 %s, -%s, %s, %s' % (v(CR[t]), v(CO + 1), v(CB + 2 * t + 1), v(CR[t])))
                A('v_fma_f32 %s, %s, %s, %s' % (v(CI[t]), v(CO + 1), v(CB + 2 * t), v(CI[t])))
            for t in range(2):
                A('v_fma_f32 %s, %s, %s, %s' % (v(CR[t] + 1), v(l8r), v(CR[t]), v(RE[t] + 14)))
                A('v_fma_f32 %s, %s, %s, -%s' % (v(CI[t] + 1), v(l8r), v(CI[t]), v(IM[t] + 14)))
            for t in range(2):
                A('v_fma_f32 %s, -%s, %s, %s' % (v(CR[t] + 1), v(l8i), v(CI[t]), v(CR[t] + 1)))
                A('v_fma_f32 %s, %s, %s, %s' % (v(CI[t] + 1), v(l8i), v(CR[t]), v(CI[t] + 1)))
            HB = [V.get(8, 2) for _ in range(4)]
            cnt_check(1, 128)
            A('s_mul_i32 %s, %s, %d' % (s(s_t0), s(s_t1), 98304 + 2048))
            A('s_add_u32 %s, %s, %s' % (s(s_sx), s(s_act), s(s_t0)))
            A('s_mul_i32 %s, %s, %d' % (s(s_t0), s(s_t1), 98304 - 2048))
            A('s_add_u32 %s, %s, 98304' % (s(s_sw), s(s_act)))
            A('s_sub_u32 %s, %s, %s' % (s(s_sw), s(s_sw), s(s_t0)))
            A('v_add_u32 %s, 4096, %s' % (v(t2), v(vl16)))
            tiles = [(RE[0], 0, 0), (IM[0], 0, 1), (RE[1], 1, 0), (IM[1], 1, 1)]
            for ti, (R_, t, im) in enumerate(tiles):
                for st in range(8):
                    if not im:
                        A('v_pk_fma_f32 %s, %s, %s, %s %s' % (v(R_ + 2 * st, 2), v(LAM + 2 * st, 2), v(CR[t], 2), v(R_ + 2 * st, 2), BLO))
                    else:
                        A('v_pk_fma_f32 %s, %s, %s, %s %s %s' % (v(R_ + 2 * st, 2), v(LAM + 2 * st, 2), v(CI[t], 2), v(R_ + 2 * st, 2), BLO, NEG0))
                for st in range(8):
                    A('v_pk_fma_f32 %s, %s, %s, %s %s %s' % (v(R_ + 2 * st, 2), v(LAM + 2 * st, 2), v((CR if im else CI)[t], 2), v(R_ + 2 * st, 2), BHI, NEG0))
                pack(A, HB[ti], R_, 8)
                mfma(A, v(R_, 16), v(HB[ti], 4), v(SEL, 4), '0')
                mfma(A, v(R_, 16), v(HB[ti] + 4, 4), v(SEL + 4, 4), v(R_, 16))
                if ti >= 1:
                    R2, tp_, imp = tiles[ti - 1]
                    pack(A, HB[ti - 1], R2, 8)
                    for n in range(2):
                        A('buffer_store_dwordx4 %s, %s, %s, %s offen offset:%d sc1' % (v(HB[ti - 1] + 4 * n, 4), v(t2 if imp else vl16), srd(rWS), s(s_sw if tp_ else s_sx), 1024 * n), 'pubH')
            R2, tp_, imp = tiles[3]
            pack(A, HB[3], R2, 8)
            for n in range(2):
                A('buffer_store_dwordx4 %s, %s, %s, %s offen offset:%d sc1' % (v(HB[3] + 4 * n, 4), v(t2), srd(rWS), s(s_sw), 1024 * n), 'pubH')
            self.stamp()
            V.put(EV, 16); V.put(CA, 4); V.put(CB, 4); V.put(EA, 8); V.put(LAM, 16); V.put(L16, 2); V.put(L32, 2); V.put(L64, 2)
            V.put(CO, 2); V.put(WJ, 16); V.put(LO16, 4); V.put(FIRST, 2); V.put(E64, 4); V.put(EE, 2); V.put(ACC, 64)
        else:
            self.stamp(); self.stamp()

        for p in range(3):
            w2_fetch(p)
            for q in w2_dmas(p + 3):
                A.seq(q)
        if S:
            for h_ in HB:
                V.put(h_, 8)
        else:
            cnt_check(1, 128)
        V.put(vCNT); V.put(vCA); V.put(CD, 4); V.put(OD, 4)

        KG = V.get(64, 4); KS = V.get(16, 4)
        A('s_lshl_b32 %s, %s, 2' % (s(s_t0), s(s_g)))
        A('s_add_u32 %s, %s, %s' % (s(s_t0), s(s_t0), s(s_t2)))
        A('s_mul_i32 %s, %s, %d' % (s(s_t0), s(s_t0), 16 * 1152))
        A('s_add_u32 %s, %s, 0x%x' % (s(s_sx), s(s_t0), KVP + ty * 2 * 16 * 1152))
        A('v_and_b32 %s, 15, v0' % v(t0))
        A('v_mul_u32_u24 %s, 1152, %s' % (v(t0), v(t0)))
        A('s_lshl_b32 %s, %s, 9' % (s(s_t0), s(s_t1)))
        A('v_lshl_add_u32 %s, %s, 4, %s' % (v(t1), v(vsw23), s(s_t0)))
        A('v_lshl_add_u32 %s, %s, 8, %s' % (v(t1), v(vhh), v(t1)))
        A('s_lshl_b32 %s, %s, 5' % (s(s_t0), s(s_t1)))
        A('s_add_u32 %s, %s, 1024' % (s(s_t0), s(s_t0)))
        A('v_lshl_add_u32 %s, %s, 4, %s' % (v(t2), v(vhh), s(s_t0)))
        A('v_cmp_gt_u32 vcc, 16, %s' % v(vn))
        A('v_cndmask_b32 %s, %s, %s, vcc' % (v(t1), v(t2), v(t1)))
        lab = 'L_%s_kp' % T
        A(lab + ':')
        A('buffer_load_dword %s, %s, %s, %s offen offset:1056 sc1' % (v(t2), v(t0), srd(rWS), s(s_sx)), 'kp')
        A('s_waitcnt vmcnt(0)')
        A('v_cmp_eq_u32 vcc, -1, %s' % v(t2))
        A('s_cbranch_vccnz %s_r' % lab)
        A(lab + '_d:')
        self.tail.append('\n'.join([lab + '_r:', spin(lab), 's_branch %s' % lab]))
        self.stamp()
        lab = 'L_%s_kg' % T
        A(lab + ':')
        for bb in range(16):
            if bb % 4 == 0:
                A('s_add_u32 %s, %s, %d' % (s(s_sw), s(s_sx), bb * 1152))
            A('buffer_load_dwordx4 %s, %s, %s, %s offen offset:%d sc1' % (v(KG + 4 * bb, 4), v(t1), srd(rWS), s(s_sw), (bb % 4) * 1152), 'kg%d' % bb)
        A('v_mov_b32 %s, 0' % v(t2))
        for bb in range(16):
            A.vwait('kg%d' % bb)
            mfma(A, v(KS, 16), v(SEL, 4), v(KG + 4 * bb, 4), v(KS, 16) if bb else '0')
            A('v_max3_u32 %s, %s, %s, %s' % (v(t2), v(t2), v(KG + 4 * bb), v(KG + 4 * bb + 1)))
            A('v_max3_u32 %s, %s, %s, %s' % (v(t2), v(t2), v(KG + 4 * bb + 2), v(KG + 4 * bb + 3)))
        A('v_cmp_eq_u32 vcc, -1, %s' % v(t2))
        A('s_cbranch_vccnz %s_r' % lab)
        A(lab + '_d:')
        self.tail.append('\n'.join([lab + '_r:', 's_nop 15', spin(lab), 's_branch %s' % lab]))
        A('v_add_u32 %s, %d, %s' % (v(t0), L_KVS, v(vl16)))
        A('s_lshr_b32 %s, %s, 2' % (s(s_t0), s(s_m0x)))
        A('v_add_u32 %s, %s, %s' % (v(t1), s(s_t0), v(t0)))
        pack(A, KG, KS, 4)
        A('ds_write_b128 %s, %s' % (v(t1), v(KG, 4)), 'ksw')
        A.lwait('ksw')
        A('s_barrier')
        for i in range(4):
            A('ds_read_b128 %s, %s offset:%d' % (v(KS + 4 * i, 4), v(t0), 1024 * i), 'ksr')
        A('s_mul_i32 %s, %s, 98304' % (s(s_t0), s(s_t1)))
        A('s_add_u32 %s, %s, %s' % (s(s_t0), s(s_t0), s(s_act)))
        A('s_add_u32 %s, %s, %d' % (s(s_t0), s(s_t0), (8 + 2 * ty) * 1024))
        A.lwait('ksr')
        A('s_barrier')
        NN = [KG + 16, KG + 32]
        for n in range(2):
            for e in range(2):
                mfma(A, v(NN[e], 16), v(KS + 8 * e + 4 * n, 4), v(FQ[e] + 4 * n, 4), v(NN[e], 16) if n else '0')
        qs = []
        for e in range(2):
            q = Seq(); N = NN[e]
            q('v_add_f32 %s, 0x358637bd, %s' % (v(N + 8), v(N + 8)))
            q('v_rcp_f32 %s, %s' % (v(N + 8), v(N + 8)))
            q('v_mul_f32 %s, %s, %s' % (v(N + 8), v(vOMG), v(N + 8)))
            for i in range(0, 8, 2):
                q('v_pk_mul_f32 %s, %s, %s %s' % (v(N + i, 2), v(N + 8, 2), v(N + i, 2), BLO2))
            pack(q, N + 12, N, 4)
            q('buffer_store_dwordx4 %s, %s, %s, %s offen offset:%d sc1' % (v(N + 12, 4), v(vl16), srd(rWS), s(s_t0), 1024 * e), 'pubO')
            qs.append(q)
        A.seq(weave(*qs))
        self.stamp()
        for p in range(3, 6):
            w2_fetch(p)
        V.put(KS, 16); V.put(FQ[0], 8); V.put(FQ[1], 8); V.put(SEL, 8); V.put(vG); V.put(vOMG); V.put(AC, 4); V.put(AO, 2); V.put(vsw23)

        XT = V.get(8, 2); DS_ = V.get(2, 2); GV = V.get(6, 2); OA = V.get(); SK = V.get(16, 4)
        A('v_and_b32 %s, 16, v0' % v(t0))
        A('v_lshrrev_b32 %s, 1, %s' % (v(t0), v(t0)))
        A('v_add_u32 %s, %s, %s' % (v(t0), v(t0), v(vhh)))
        A('v_and_b32 %s, 15, v0' % v(t1))
        A('v_lshlrev_b32 %s, 3, %s' % (v(t1), v(t1)))
        A('v_lshl_add_u32 %s, %s, 10, %s' % (v(t0), v(t0), v(t1)))
        A('s_lshl_b32 %s, %s, 6' % (s(s_t0), s(s_tt)))
        A('s_lshl_b32 %s, %s, 5' % (s(s_tmpA), s(s_t2)))
        A('s_add_u32 %s, %s, %s' % (s(s_t0), s(s_t0), s(s_tmpA)))
        A('s_lshl_b32 %s, %s, 2' % (s(s_tmpA), s(s_t1)))
        A('s_add_u32 %s, %s, %s' % (s(s_t0), s(s_t0), s(s_tmpA)))
        A('s_lshl_b32 %s, %s, 10' % (s(s_t0), s(s_t0)))
        A('s_lshl_b32 %s, %s, 7' % (s(s_tmpA), s(s_ct)))
        A('s_add_u32 %s, %s, %s' % (s(s_t0), s(s_t0), s(s_tmpA)))
        A('v_add_u32 %s, %s, %s' % (v(t0), s(s_t0), v(t0)))
        A('v_lshlrev_b32 %s, 1, %s' % (v(OA), v(t0)))
        A('s_mov_b32 %s, 16384' % s(s_sw))
        for q_ in range(4):
            A('buffer_load_dwordx2 %s, %s, %s, %s offen offset:%d' % (v(XT + 2 * q_, 2), v(t0), srd(rX), s(s_sw) if q_ & 1 else '0', 2048 * (q_ >> 1)), 'ep')
        A('v_add_u32 %s, %s, %s' % (v(t1), s(s_tmpA), v(t1)))
        A('global_load_dwordx2 %s, %s, %s' % (v(DS_, 2), v(t1), s(sD, 2)), 'ep')
        A('s_lshl_b32 %s, %s, 8' % (s(s_t0), s(s_tt)))
        A('s_add_u32 %s, %s, 0x%x' % (s(s_sx), s(s_t0), GB))
        A('s_lshl_b32 %s, %s, 6' % (s(s_t0), s(s_w)))
        A('v_lshrrev_b32 %s, 4, v0' % v(t2))
        A('v_lshl_add_u32 %s, %s, 2, %s' % (v(t2), v(t2), s(s_t0)))
        A('v_lshlrev_b32 %s, 2, %s' % (v(t3), v(vn)))
        lab = 'L_%s_g' % T
        A(lab + ':')
        for q_ in range(4):
            A('buffer_load_dword %s, %s, %s, %s offen offset:%d sc1' % (v(GV + q_), v(t2), srd(rWS), s(s_sx), 16 * q_), 'gv')
        for m in range(2):
            A('buffer_load_dword %s, %s, %s, %s offen offset:%d sc1' % (v(GV + 4 + m), v(t3), srd(rWS), s(s_sx), 128 * m), 'gv')
        A('s_waitcnt vmcnt(0)')
        A('v_max3_u32 %s, %s, %s, %s' % (v(t0), v(GV), v(GV + 1), v(GV + 2)))
        A('v_max3_u32 %s, %s, %s, %s' % (v(t1), v(GV + 3), v(GV + 4), v(GV + 5)))
        A('v_max_u32 %s, %s, %s' % (v(t0), v(t0), v(t1)))
        A('v_cmp_eq_u32 vcc, -1, %s' % v(t0))
        A('s_cbranch_vccnz %s_r' % lab)
        A(lab + '_d:')
        self.tail.append('\n'.join([lab + '_r:', spin(lab), 's_branch %s' % lab]))
        V.put(KG, 64)
        A('s_mul_i32 %s, %s, 196608' % (s(s_act), s(s_tt)))
        A('s_mul_i32 %s, %s, 24576' % (s(s_t0), s(s_w)))
        A('s_add_u32 %s, %s, %s' % (s(s_act), s(s_act), s(s_t0)))
        PH_ = V.get(); PO_ = V.get()
        A('v_and_b32 %s, 1, v0' % v(t0))
        A('v_bfe_u32 %s, v0, 1, 1' % v(t1))
        A('v_mul_u32_u24 %s, 12288, %s' % (v(t1), v(t1)))
        A('v_mul_u32_u24 %s, %d, %s' % (v(t2), 98304 - 2048, v(t0)))
        A('v_sub_u32 %s, %s, %s' % (v(PH_), v(t1), v(t2)))
        A('v_add_u32 %s, %d, %s' % (v(PH_), 98304 + 5 * 1024, v(PH_)))
        A('v_mul_u32_u24 %s, 98304, %s' % (v(t2), v(t0)))
        A('v_add_u32 %s, %s, %s' % (v(t1), v(t1), v(t2)))
        A('v_and_b32 %s, 4, v0' % v(t2))
        A('v_lshl_add_u32 %s, %s, 9, %s' % (v(t1), v(t2), v(t1)))
        A('v_add_u32 %s, %d, %s' % (v(PO_), 9 * 1024, v(t1)))

        def probe(name, va):
            lab = 'L_%s_%s' % (T, name)
            A(lab + ':')
            A('buffer_load_dword %s, %s, %s, %s offen sc1' % (v(t3), v(va), srd(rWS), s(s_act)), 'pr')
            A('s_waitcnt vmcnt(0)')
            A('v_cmp_eq_u32 vcc, -1, %s' % v(t3))
            A('s_cbranch_vccnz %s_r' % lab)
            A(lab + '_d:')
            self.tail.append('\n'.join([lab + '_r:', spin(lab), 's_branch %s' % lab]))

        sk = Seq()
        DF = V.get(4, 2)
        sk('v_lshlrev_b32 %s, 16, %s' % (v(DF), v(DS_)))
        sk('v_and_b32 %s, 0xffff0000, %s' % (v(DF + 1), v(DS_)))
        sk('v_lshlrev_b32 %s, 16, %s' % (v(DF + 2), v(DS_ + 1)))
        sk('v_and_b32 %s, 0xffff0000, %s' % (v(DF + 3), v(DS_ + 1)))
        for q_ in range(4):
            for hf in range(2):
                d = SK + 4 * q_ + 2 * hf
                sk('v_lshlrev_b32 %s, 16, %s' % (v(d), v(XT + 2 * q_ + hf)))
                sk('v_and_b32 %s, 0xffff0000, %s' % (v(d + 1), v(XT + 2 * q_ + hf)))
                sk('v_pk_mul_f32 %s, %s, %s' % (v(d, 2), v(d, 2), v(DF + 2 * hf, 2)))
                sk('v_pk_mul_f32 %s, %s, %s %s' % (v(d, 2), v(GV + (q_ & 2), 2), v(d, 2), BHI2 if q_ & 1 else BLO2))
        A.seq(sk)
        V.put(XT, 8); V.put(DS_, 2); V.put(DF, 4)
        AC2 = V.get(64, 4); FRS = [V.get(16, 2) for _ in range(8)]
        VM1 = V.get()
        A('v_add_u32 %s, 98304, %s' % (v(VM1), v(vl16)))
        groups = [(p, h) for p in range(6) for h in range(2)]

        def kstep(p, ks):
            return (12 * (p >> 1) + 4 * (p & 1) + ks) if p < 4 else (12 * (p - 4) + 8 + ks)

        def gloads(gi):
            p, h = groups[gi]
            L_ = ['s_add_u32 %s, %s, %d' % (s(s_sw), s(s_act), kstep(p, 2 * h) * 1024)]
            for kk in range(2):
                for m in range(2):
                    r = FRS[gi % 8] + 8 * kk + 4 * m
                    L_.append('buffer_load_dwordx4 %s, %s, %s, %s offen offset:%d sc1' % (v(r, 4), v(VM1 if m else vl16), srd(rWS), s(s_sw), 1024 * kk))
            return L_

        def gissue(gi):
            for t_ in gloads(gi):
                A(t_, 'fr%d' % gi)

        def gcompute(gi):
            p, h = groups[gi]
            base = FRS[gi % 8]
            lab = 'L_%s_f%d' % (T, gi)
            A.vwait('fr%d' % gi)
            A(lab + ':')
            A('v_max3_u32 %s, %s, %s, %s' % (v(t0), v(base), v(base + 1), v(base + 2)))
            A('v_max3_u32 %s, %s, %s, %s' % (v(t1), v(base + 3), v(base + 4), v(base + 5)))
            for i in range(6, 14, 4):
                A('v_max3_u32 %s, %s, %s, %s' % (v(t0), v(t0), v(base + i), v(base + i + 1)))
                A('v_max3_u32 %s, %s, %s, %s' % (v(t1), v(t1), v(base + i + 2), v(base + i + 3)))
            A('v_max3_u32 %s, %s, %s, %s' % (v(t0), v(t0), v(base + 14), v(base + 15)))
            A('v_max_u32 %s, %s, %s' % (v(t0), v(t0), v(t1)))
            A('v_cmp_eq_u32 vcc, -1, %s' % v(t0))
            A('s_cbranch_vccnz %s_r' % lab)
            A(lab + '_d:')
            self.tail.append('\n'.join([lab + '_r:', spin(lab)] + gloads(gi) + ['s_waitcnt vmcnt(0)', 's_branch %s' % lab]))
            for kk in range(2):
                for m in range(2):
                    for c2 in range(2):
                        d = AC2 + 32 * c2 + 16 * m
                        mfma(A, v(d, 16), ag(w2reg(p, c2, 2 * h + kk), 4), v(base + 8 * kk + 4 * m, 4), v(d, 16) if (gi or kk) else '0')

        probe('ph', PH_)
        self.stamp()
        LA = o.get('la', 3)
        for gi in range(LA):
            gissue(gi)
        for gi in range(8):
            if gi + LA < 8:
                gissue(gi + LA)
            gcompute(gi)
        self.stamp()
        probe('po', PO_)
        self.stamp()
        for gi in range(8, 12):
            gissue(gi)
        RW = V.get(4); RR = V.get(4)
        A('v_and_b32 %s, 7, v0' % v(t2))
        A('v_xor_b32 %s, %s, %s' % (v(t2), v(t2), v(vhh)))
        A('v_lshlrev_b32 %s, 4, %s' % (v(t2), v(t2)))
        A('v_lshl_add_u32 %s, %s, 8, %s' % (v(t2), v(vn), v(t2)))
        A('s_lshl_b32 %s, %s, 14' % (s(s_t0), s(s_t1)))
        A('s_lshl_b32 %s, %s, 17' % (s(s_tmpA), s(s_t2)))
        A('s_add_u32 %s, %s, %s' % (s(s_t0), s(s_t0), s(s_tmpA)))
        A('v_add_u32 %s, %s, %s' % (v(RW), s(s_t0), v(t2)))
        for q_ in range(1, 4):
            A('v_xor_b32 %s, %d, %s' % (v(RW + q_), q_ << 5, v(RW)))
        A('v_lshrrev_b32 %s, 4, v0' % v(t2))
        A('v_xor_b32 %s, %s, v0' % (v(t2), v(t2)))
        A('v_lshl_add_u32 %s, %s, 4, %s' % (v(RR), v(t2), s(s_m0x)))
        A('v_xor_b32 %s, 64, %s' % (v(RR + 1), v(RR)))
        A('v_add_u32 %s, %d, %s' % (v(RR + 2), AUX, v(RR)))
        A('v_add_u32 %s, %d, %s' % (v(RR + 3), AUX, v(RR + 1)))
        for c2 in range(2):
            for m in range(2):
                d = AC2 + 32 * c2 + 16 * m
                for i in range(0, 16, 2):
                    A('v_pk_mul_f32 %s, %s, %s %s' % (v(d + i, 2), v(GV + 4, 2), v(d + i, 2), BHI2 if m else BLO2))
        for gi in range(8, 12):
            gcompute(gi)
        self.stamp()
        for m in range(2):
            for c2 in range(2):
                for q_ in range(4):
                    A('ds_write_b128 %s, %s offset:%d' % (v(RW + q_), v(AC2 + 32 * c2 + 16 * m + 4 * q_, 4), 8192 * m + 128 * c2), 'rw')
        A.lwait('rw')
        A('s_barrier')
        A('s_mov_b32 %s, 32768' % s(s_sw))
        for q_ in range(4):
            for p in range(4):
                A('ds_read_b128 %s, %s offset:%d' % (v(FRS[q_] + 4 * p, 4), v(RR + (q_ & 1) + (p & 2)), 1024 * q_ + 16384 * (p & 1)), 'rr%d' % q_)
        A('v_add_u32 %s, 4096, %s' % (v(t0), v(OA)))
        for q_ in range(4):
            A.lwait('rr%d' % q_)
            b_ = FRS[q_]
            for hf in (0, 2):
                A('v_pk_add_f32 %s, %s, %s' % (v(b_ + hf, 2), v(b_ + hf, 2), v(b_ + 4 + hf, 2)))
                A('v_pk_add_f32 %s, %s, %s' % (v(b_ + 8 + hf, 2), v(b_ + 8 + hf, 2), v(b_ + 12 + hf, 2)))
            for hf in (0, 2):
                A('v_pk_add_f32 %s, %s, %s' % (v(b_ + hf, 2), v(b_ + hf, 2), v(SK + 4 * q_ + hf, 2)))
            for hf in (0, 2):
                A('v_pk_add_f32 %s, %s, %s' % (v(b_ + hf, 2), v(b_ + hf, 2), v(b_ + 8 + hf, 2)))
            A('buffer_store_dwordx4 %s, %s, %s, %s offen sc1' % (v(b_, 4), v(t0 if q_ & 2 else OA), srd(rOUT), s(s_sw) if q_ & 1 else '0'), 'out')
        if o.get('stamps'):
            self.stamp()
            A('s_waitcnt vmcnt(0)')
            self.stamp()
            A('s_waitcnt lgkmcnt(0)')
            self.stamp()
            A('v_writelane_b32 %s, %s, 31' % (v(self.vST), s(s_spin)))
            A('s_lshl_b32 %s, s2, 10' % s(s_t0))
            A('s_lshl_b32 %s, %s, 8' % (s(s_tmpA), s(s_w)))
            A('s_add_u32 %s, %s, %s' % (s(s_t0), s(s_t0), s(s_tmpA)))
            A('s_add_u32 %s, %s, 0x%x' % (s(s_t0), s(s_t0), STAMP))
            A('v_lshl_add_u32 %s, v0, 2, %s' % (v(t0), s(s_t0)))
            A('global_store_dword %s, %s, %s' % (v(t0), v(self.vST), s(sWs, 2)))
        A('s_endpgm')
        for blk in self.tail:
            A.vm = []; A.lg = []
            A(blk)
        self.tail = []
        return V.top

    def build(self):
        A = self.A
        self.prologue()
        top1 = self.path('KV')
        A('L_S:')
        top2 = self.path('S')
        A('L_end:')
        A('s_endpgm')
        ref = open('cdna_kernels/%s.s.ref' % NAME).read().split('\n')
        hdr = [l for l in ref if l.startswith(';') and '@launch' not in l]
        out = '\n'.join(hdr) + '\n; @launch grid=(256,1,1) block=(256,1,1) lds=163840\n'
        out += '.amdgcn_target "amdgcn-amd-amdhsa--gfx950"\n.text\n.globl %s\n.p2align 8\n.type %s,@function\n%s:\n' % (KN, KN, KN)
        out += A.text()
        out += '''.section .rodata,"a"
.p2align 6
.amdhsa_kernel %s
  .amdhsa_next_free_vgpr 512
  .amdhsa_next_free_sgpr 102
  .amdhsa_accum_offset 256
  .amdhsa_group_segment_fixed_size 0
  .amdhsa_kernarg_size 136
  .amdhsa_user_sgpr_count 2
  .amdhsa_user_sgpr_kernarg_segment_ptr 1
  .amdhsa_system_sgpr_workgroup_id_x 1
.end_amdhsa_kernel
''' % KN
        sys.stderr.write('vgpr top KV %d S %d\n' % (top1, top2))
        return out


def parse_opts(args):
    o = {}
    for a in args:
        k, _, val = a.partition('=')
        o[k] = int(val) if val.lstrip('-').isdigit() else (val or 1)
    return o


if __name__ == '__main__':
    out = sys.argv[1]
    open(out, 'w').write(Gen(parse_opts(sys.argv[2:])).build())
```
